```python
import torch

def _softmax(x, axis=-1):
    return torch.softmax(x, dim=axis)
def _gelu(x):
    return torch.nn.functional.gelu(x, approximate="tanh")
def _silu(x):
    return torch.nn.functional.silu(x)
def _sigmoid(x):
    return torch.sigmoid(x)
def _layernorm(x, axis=-1, eps=1e-5):
    m = x.mean(dim=axis, keepdim=True)
    v = x.var(dim=axis, keepdim=True, unbiased=False)
    return (x - m) / torch.sqrt(v + eps)
def _scatter_add(tgt, idx, src, axis=0):
    return tgt.clone().index_add_(axis, idx, src)
def _segment_sum(src, seg, n):
    out = torch.zeros((n,) + src.shape[1:], dtype=src.dtype)
    return out.index_add_(0, seg, src)
def _pad(x, pw):
    flat = tuple(v for pair in reversed(pw) for v in pair)
    return torch.nn.functional.pad(x, flat)

kernel_name = 'gated_mix__ssm_conv_s5__dense_activation_mish__prompt'

def setup_inputs():

    _w = (lambda a: (lambda t: t.to(torch.bfloat16) if t.is_floating_point() else t)(torch.as_tensor(a)))
    def _A_setup():
        B, S, D = 1, 2048, 640
        P = D
        Lambda_re = -0.5 * (lambda _x: torch.exp(torch.as_tensor(_x)))((lambda *s: torch.randn(*s, dtype=torch.bfloat16) * 0.2)(P))
        Lambda_im = (lambda *s: torch.randn(*s, dtype=torch.bfloat16) * 0.2)(P) * 1.0
        B_re = (lambda *s: torch.randn(*s, dtype=torch.bfloat16) * 0.2)(P, D) * (D ** -0.5)
        B_im = (lambda *s: torch.randn(*s, dtype=torch.bfloat16) * 0.2)(P, D) * (D ** -0.5)
        C_re = (lambda *s: torch.randn(*s, dtype=torch.bfloat16) * 0.2)(D, P) * (P ** -0.5)
        C_im = (lambda *s: torch.randn(*s, dtype=torch.bfloat16) * 0.2)(D, P) * (P ** -0.5)
        log_dt = (lambda *s: torch.randn(*s, dtype=torch.bfloat16) * 0.2)(P) * 0.3 - 2.0
        Dskip = (lambda *s: torch.randn(*s, dtype=torch.bfloat16) * 0.05)(D)
        return {
            "x": _w((lambda *s: torch.randn(*s, dtype=torch.bfloat16) * 0.05)(B, S, D)),
            "Lambda_re": _w(Lambda_re),
            "Lambda_im": _w(Lambda_im),
            "B_re": _w(B_re),
            "B_im": _w(B_im),
            "C_re": _w(C_re),
            "C_im": _w(C_im),
            "log_dt": _w(log_dt),
            "Dskip": _w(Dskip),
        }
    _A_in = _A_setup()

    def _B_setup():
        B, S, D, F = 1, 2048, 640, 1536
        return {
            "x": _w((lambda *s: torch.randn(*s, dtype=torch.bfloat16) * 0.05)(B, S, D)),
            "w1": _w((lambda *s: torch.randn(*s, dtype=torch.bfloat16) * 3.2)(D, F) * (D ** -0.5)),
            "b1": _w((lambda *s: torch.randn(*s, dtype=torch.bfloat16) * 0.05)(F)),
            "w2": _w((lambda *s: torch.randn(*s, dtype=torch.bfloat16) * 0.05)(F, D) * (F ** -0.5)),
        }
    _B_in = _B_setup()

    return {
        "A_x": _A_in["x"],
        "A_Lambda_re": _A_in["Lambda_re"],
        "A_Lambda_im": _A_in["Lambda_im"],
        "A_B_re": _A_in["B_re"],
        "A_B_im": _A_in["B_im"],
        "A_C_re": _A_in["C_re"],
        "A_C_im": _A_in["C_im"],
        "A_log_dt": _A_in["log_dt"],
        "A_Dskip": _A_in["Dskip"],
        "B_x": _B_in["x"],
        "B_w1": _B_in["w1"],
        "B_b1": _B_in["b1"],
        "B_w2": _B_in["w2"],
        "gate_w": _w((lambda *s: torch.randn(*s, dtype=torch.bfloat16) * 0.05)(640) * 16.0),
    }

def reference(A_x, A_Lambda_re, A_Lambda_im, A_B_re, A_B_im, A_C_re, A_C_im, A_log_dt, A_Dskip, B_x, B_w1, B_b1, B_w2, gate_w):
    def _A_ref(x, Lambda_re, Lambda_im, B_re, B_im, C_re, C_im, log_dt, Dskip):
        Bsz, L, H = x.shape
        Lam = Lambda_re + 1j * Lambda_im
        Bmat = B_re + 1j * B_im
        Cmat = C_re + 1j * C_im
        dt = torch.exp(log_dt)
        Lam_bar = torch.exp(dt * Lam)
        B_bar = ((Lam_bar - 1.0) / Lam)[:, None] * Bmat
        Bu = torch.einsum("bld,pd->blp", x + 0j, B_bar)
        h = torch.zeros_like(Bu[:, 0, :])
        hs = []
        for t in range(L):
            h = Lam_bar[None, :] * h + Bu[:, t, :]
            hs.append(h)
        hseq = torch.stack(hs, 1)
        y = 2.0 * torch.einsum("blp,dp->bld", hseq, Cmat).real + x * Dskip[None, None, :]
        return y

    def _B_ref(x, w1, b1, w2):
        h = torch.einsum("bsd,df->bsf", x, w1) + b1
        sp = torch.log1p(torch.exp(-torch.abs(h))) + torch.where(h > 0, h, torch.zeros_like(h))
        act = h * torch.tanh(sp)
        return torch.einsum("bsf,fd->bsd", act, w2)

    x = A_x
    g = _sigmoid((x * gate_w).sum(-1, keepdims=True))
    a = _A_ref(x, A_Lambda_re, A_Lambda_im, A_B_re, A_B_im, A_C_re, A_C_im, A_log_dt, A_Dskip)
    b = _B_ref(x, B_w1, B_b1, B_w2)
    return g * a + (1 - g) * b
```

```python
import re

class Asm:
    def __init__(self):
        self.lines = []
        self.uid = 0
    def __call__(self, s):
        for l in s.strip().split('\n'):
            l = l.strip()
            if l:
                self.lines.append('    ' + l)
    def label(self, l):
        self.lines.append(l + ':')
    def raw(self, s):
        self.lines.append(s)
    def newlabel(self, base='L'):
        self.uid += 1
        return f'{base}_{self.uid}'
    def text(self):
        return '\n'.join(self.lines) + '\n'

TRANS = ('v_exp_f32', 'v_log_f32', 'v_rcp_f32', 'v_rsq_f32', 'v_sqrt_f32', 'v_sin_f32', 'v_cos_f32')

def _regs(tok):
    tok = tok.strip()
    tok = tok.replace('-', '').replace('abs(', '').replace(')', '').replace('|', '')
    m = re.fullmatch(r'([vsa])(\d+)', tok)
    if m: return [(m.group(1), int(m.group(2)))]
    m = re.fullmatch(r'([vsa])\[(\d+):(\d+)\]', tok)
    if m: return [(m.group(1), i) for i in range(int(m.group(2)), int(m.group(3)) + 1)]
    if tok in ('vcc', 'exec', 'm0'): return [(tok, 0)]
    return []

def parse(line):
    line = line.split(';')[0].strip()
    if not line or line.endswith(':') or line.startswith('.'):
        return None
    parts = line.split(None, 1)
    op = parts[0]
    ops = []
    if len(parts) > 1:
        rest = parts[1]
        toks = [t.strip() for t in rest.split(',')]
        out = []
        for t in toks:
            out.append(t.split()[0] if t.split() else '')
        ops = out
    return op, ops

def lint(text):
    ins = []
    for ln, l in enumerate(text.split('\n')):
        p = parse(l)
        if p: ins.append((ln + 1, l.strip(), p[0], p[1]))
    warns = []
    def is_valu(op): return op.startswith('v_') and not op.startswith('v_mfma')
    def is_mfma(op): return op.startswith('v_mfma')
    def is_vmem(op): return op.startswith('buffer_') or op.startswith('global_')
    def is_ds(op): return op.startswith('ds_')
    def states(op, ops):
        if op == 's_nop': return int(ops[0], 0) + 1
        return 1
    def dsts(op, ops):
        if op.startswith('v_cmp'): return _regs(ops[0])
        if op in ('v_readfirstlane_b32', 'v_readlane_b32'): return _regs(ops[0])
        if op.startswith('v_add_co') or op.startswith('v_addc_co') or op.startswith('v_sub_co'): return _regs(ops[0]) + _regs(ops[1])
        if op.startswith('v_permlane32_swap'): return _regs(ops[0]) + _regs(ops[1])
        if op.startswith('v_'): return _regs(ops[0])
        if op.startswith('s_') and not op.startswith('s_cmp') and not op.startswith('s_cbranch') and op not in ('s_waitcnt', 's_barrier', 's_nop', 's_branch', 's_endpgm', 's_setprio'):
            return _regs(ops[0]) if ops else []
        if (is_vmem(op) or is_ds(op)) and ('load' in op or 'read' in op):
            return _regs(ops[0]) if ' lds' not in (' ' + ' '.join(ops)) else []
        return []
    def srcs(op, ops, line):
        r = []
        if op.startswith('v_cmp') or op in ('v_readfirstlane_b32', 'v_readlane_b32'):
            for o in ops[1:]: r += _regs(o)
        elif op.startswith('v_add_co') or op.startswith('v_addc_co'):
            for o in ops[2:]: r += _regs(o)
        elif op.startswith('v_permlane32_swap'):
            for o in ops: r += _regs(o)
        elif op.startswith('v_fmac') :
            for o in ops: r += _regs(o)
        elif op.startswith('v_'):
            for o in ops[1:]: r += _regs(o)
            if op.startswith('v_cndmask') and len(ops) == 3: r += [('vcc', 0)]
        elif is_vmem(op) or is_ds(op):
            if ('load' in op or 'read' in op) and not line.endswith('lds'):
                for o in ops[1:]: r += _regs(o)
                if 'd16' in op: r += _regs(ops[0])
            else:
                for o in ops: r += _regs(o)
            if line.endswith('lds'): r += [('m0', 0)]
        elif op.startswith('s_'):
            for o in ops[1:]: r += _regs(o)
        return r
    n = len(ins)
    for i, (ln, line, op, ops) in enumerate(ins):
        d = set(dsts(op, ops))
        if not d: continue
        dist = 0
        for j in range(i + 1, min(n, i + 24)):
            ln2, line2, op2, ops2 = ins[j]
            s2 = set(srcs(op2, ops2, line2))
            d2 = set(dsts(op2, ops2))
            need = 0
            why = ''
            if op in TRANS and is_valu(op2) and op2 not in TRANS and (d & s2):
                need, why = 1, 'trans->valu'
            if is_valu(op) and is_mfma(op2) and (d & s2):
                need, why = max(need, 2), 'valu->mfma'
            if is_valu(op) and op2 in ('v_readfirstlane_b32', 'v_readlane_b32') and (d & s2) and any(x[0] == 'v' for x in d & s2):
                need, why = max(need, 1), 'valu->readlane'
            if is_valu(op) and any(x[0] in ('s', 'vcc') for x in d):
                sd = {x for x in d if x[0] in ('s', 'vcc')}
                if is_valu(op2) and (sd & s2): need, why = max(need, 2), 'valu sgpr->valu'
                if is_vmem(op2) and (sd & s2): need, why = max(need, 5), 'valu sgpr->vmem'
            if op.startswith('s_') and ('m0', 0) in d and ('m0', 0) in s2:
                need, why = max(need, 1), 'm0->dma'
            if is_mfma(op):
                passes = 8 if '32x32' in op else 4
                if not is_mfma(op2) and ((d & s2) or (d & d2)):
                    need, why = max(need, 12 if passes == 8 else 8), 'mfma->other'
                if is_mfma(op2):
                    sab = set(_regs(ops2[1]) + _regs(ops2[2]))
                    sc = set(_regs(ops2[3]))
                    if d & sab: need, why = max(need, 12 if passes == 8 else 8), 'mfma->mfma AB'
                    elif (d & sc) and sc != d: need, why = max(need, 10 if passes == 8 else 6), 'mfma->mfma C overlap'
            if is_valu(op) and op2.startswith('v_permlane') and (d & s2):
                need, why = max(need, 2), 'valu->permlane'
            if is_valu(op) and 'dpp' in line2 and (d & s2):
                need, why = max(need, 2), 'valu->dpp'
            if need > dist:
                warns.append(f'line {ln}: "{line}" -> line {ln2}: "{line2}" needs {need} has {dist} ({why})')
            dist += states(op2, ops2)
            if dist >= 20: break
    for i, (ln, line, op, ops) in enumerate(ins):
        if is_vmem(op) and 'store' in op and ('x4' in op or 'x3' in op):
            data = set(_regs(ops[0]))
            dist = 0
            for j in range(i + 1, min(n, i + 4)):
                ln2, line2, op2, ops2 = ins[j]
                d2 = set(dsts(op2, ops2))
                if (data & d2) and dist < 2:
                    warns.append(f'line {ln}: store data overwritten at line {ln2} dist {dist}')
                dist += states(op2, ops2)
    return warns
```

```python
import sys, struct
from asmlib import Asm, lint

NAME = 'gated_mix__ssm_conv_s5__dense_activation_mish__prompt'
def f2h(x): return '0x%08x' % struct.unpack('<I', struct.pack('<f', x))[0]

ACTF = 0x0000000
HF   = 0x0800000
W2F  = 0x1000000
CF   = 0x1200000
SLOC = 0x1400000
EEND = 0x2000000
GATE = 0x2100000
OB   = 0x2200000
WS_SIZE = 0x4000000

KA = dict(x=0, lre=8, lim=16, bre=24, bim=32, cre=40, cim=48, logdt=56, dskip=64, bx=72, w1=80, b1=88, w2=96, gw=104, out=112, dbg=120, ws=128)

LOG2E = f2h(1.4426950408889634)
LN2 = f2h(0.6931471805599453)
M2LOG2E = f2h(-2 * 1.4426950408889634)
INV2PI = f2h(0.15915494309189535)

a = Asm()

def srd(a, s, lo, hi_reg, size):
    a(f's_mov_b32 s{s}, s{lo}')
    a(f's_and_b32 s{s+1}, s{hi_reg}, 0xffff')
    a(f's_mov_b32 s{s+2}, {size}')
    a(f's_mov_b32 s{s+3}, 0x00020000')

def round_bf16_pair(a, x0, x1, t):
    a(f'v_cvt_pk_bf16_f32 v{t}, v{x0}, v{x1}')
    a(f'v_lshlrev_b32 v{x0}, 16, v{t}')
    a(f'v_and_b32 v{x1}, 0xffff0000, v{t}')

def mish_consts(a):
    a(f's_mov_b32 s60, {LOG2E}')
    a(f's_mov_b32 s61, {LN2}')
    a(f's_mov_b32 s62, {M2LOG2E}')
    a(f's_mov_b32 s63, {f2h(2.0**-12)}')
    a(f's_mov_b32 s64, {f2h(2.0**-6)}')

def mish_pair(a, x0, x1, out, T, want_th=False):
    e0, e1, l0, l1, s0, s1, d0, d1 = T
    a(f'v_mul_f32 v{e0}, -abs(v{x0}), s60')
    a(f'v_mul_f32 v{e1}, -abs(v{x1}), s60')
    a(f'v_exp_f32 v{e0}, v{e0}')
    a(f'v_exp_f32 v{e1}, v{e1}')
    a(f'v_max_f32 v{s0}, 0, v{x0}')
    a(f'v_max_f32 v{s1}, 0, v{x1}')
    round_bf16_pair(a, e0, e1, d0)
    a(f'v_add_f32 v{l0}, 1.0, v{e0}')
    a(f'v_add_f32 v{l1}, 1.0, v{e1}')
    a(f'v_log_f32 v{l0}, v{l0}')
    a(f'v_log_f32 v{l1}, v{l1}')
    a(f'v_cmp_gt_f32 s[66:67], s63, v{e0}')
    a(f'v_cmp_gt_f32 s[68:69], s63, v{e1}')
    a(f'v_mul_f32 v{l0}, s61, v{l0}')
    a(f'v_mul_f32 v{l1}, s61, v{l1}')
    a(f'v_cndmask_b32 v{l0}, v{l0}, v{e0}, s[66:67]')
    a(f'v_cndmask_b32 v{l1}, v{l1}, v{e1}, s[68:69]')
    round_bf16_pair(a, l0, l1, d0)
    a(f'v_add_f32 v{s0}, v{s0}, v{l0}')
    a(f'v_add_f32 v{s1}, v{s1}, v{l1}')
    round_bf16_pair(a, s0, s1, d0)
    a(f'v_mul_f32 v{e0}, s62, v{s0}')
    a(f'v_mul_f32 v{e1}, s62, v{s1}')
    a(f'v_exp_f32 v{e0}, v{e0}')
    a(f'v_exp_f32 v{e1}, v{e1}')
    a(f'v_cmp_gt_f32 s[66:67], s64, v{s0}')
    a(f'v_cmp_gt_f32 s[68:69], s64, v{s1}')
    a(f'v_add_f32 v{d0}, 1.0, v{e0}')
    a(f'v_add_f32 v{d1}, 1.0, v{e1}')
    a(f'v_rcp_f32 v{d0}, v{d0}')
    a(f'v_rcp_f32 v{d1}, v{d1}')
    a(f'v_sub_f32 v{e0}, 1.0, v{e0}')
    a(f'v_sub_f32 v{e1}, 1.0, v{e1}')
    a(f'v_mul_f32 v{e0}, v{e0}, v{d0}')
    a(f'v_mul_f32 v{e1}, v{e1}, v{d1}')
    a(f'v_cndmask_b32 v{e0}, v{e0}, v{s0}, s[66:67]')
    a(f'v_cndmask_b32 v{e1}, v{e1}, v{s1}, s[68:69]')
    round_bf16_pair(a, e0, e1, d0)
    if want_th: return
    a(f'v_mul_f32 v{e0}, v{x0}, v{e0}')
    a(f'v_mul_f32 v{e1}, v{x1}, v{e1}')
    a(f'v_cvt_pk_bf16_f32 v{out}, v{e0}, v{e1}')

def lam_compute(a, vlre, vlim, vldt, lr, li, t0, t1):
    a(f's_mov_b32 s70, {LOG2E}')
    a(f's_mov_b32 s71, {INV2PI}')
    a(f'v_lshlrev_b32 v{vlre}, 16, v{vlre}')
    a(f'v_lshlrev_b32 v{vlim}, 16, v{vlim}')
    a(f'v_lshlrev_b32 v{vldt}, 16, v{vldt}')
    a(f'v_mul_f32 v{t0}, s70, v{vldt}')
    a(f'v_exp_f32 v{t0}, v{t0}')
    a(f's_nop 0')
    a(f'v_cvt_pk_bf16_f32 v{t0}, v{t0}, v{t0}')
    a(f'v_lshlrev_b32 v{vldt}, 16, v{t0}')
    a(f'v_mul_f32 v{t0}, v{vldt}, v{vlre}')
    a(f'v_mul_f32 v{t1}, v{vldt}, v{vlim}')
    a(f'v_mul_f32 v{t0}, s70, v{t0}')
    a(f'v_mul_f32 v{t1}, s71, v{t1}')
    a(f'v_exp_f32 v{t0}, v{t0}')
    a(f'v_fract_f32 v{t1}, v{t1}')
    a(f'v_cos_f32 v{lr}, v{t1}')
    a(f'v_sin_f32 v{li}, v{t1}')
    a(f's_nop 0')
    a(f'v_mul_f32 v{lr}, v{lr}, v{t0}')
    a(f'v_mul_f32 v{li}, v{li}, v{t0}')

XB = [0, 16384, 32768]
WB = [49152, 81920, 114688]
K1_LDS = 147456
ACC = 128
def acc(mt, jt): return ACC + (mt * 2 + jt) * 16
FX = [24, 48]
FW = [40, 64]

def k1_dma(a, s, mlp):
    b = s % 3
    rowstep = 8 if mlp else 4
    for ii in range(4):
        a(f's_add_u32 m0, s28, {XB[b] + ii * 1024}')
        a(f's_add_u32 s30, s26, {ii * rowstep * 1280 + 128 * s}')
        a(f'buffer_load_dwordx4 v{4 + (ii & 1)}, s[8:11], s30 offen lds')
    for jj in range(8):
        a(f's_add_u32 m0, s29, {WB[b] + jj * 1024}')
        if mlp:
            a(f's_add_u32 s30, s27, {(64 * s + 2 * jj) * 3072}')
            a(f'buffer_load_dwordx4 v{6 + (jj & 1)}, s[12:15], s30 offen lds')
        else:
            a(f's_add_u32 s30, s27, {(jj & 3) * 8 * 1280 + 128 * s}')
            sr = 12 if jj < 4 else 16
            a(f'buffer_load_dwordx4 v{6 + (jj & 1)}, s[{sr}:{sr+3}], s30 offen lds')

def k1_reads(a, s, ks, st, mlp):
    b = s % 3
    n = 0
    for mt in range(4):
        r = FX[st] + mt * 4
        a(f'ds_read_b128 v[{r}:{r+3}], v{8 + ks} offset:{XB[b] + mt * 4096}'); n += 1
    for jt in range(2):
        r = FW[st] + jt * 4
        if mlp:
            base = 12 + jt if b < 2 else 16 + jt
            off = (b if b < 2 else 0) * 32768 + ks * 8192
            a(f'ds_read_b64_tr_b16 v[{r}:{r+1}], v{base} offset:{off}'); n += 1
            a(f'ds_read_b64_tr_b16 v[{r+2}:{r+3}], v{base} offset:{off + 2048}'); n += 1
        else:
            base = 12 + ks if b < 2 else 16 + ks
            off = (b if b < 2 else 0) * 32768 + jt * 4096
            a(f'ds_read_b128 v[{r}:{r+3}], v{base} offset:{off}'); n += 1
    return n

def k1_mfma(a, st, mlp):
    for mt in range(4):
        for jt in range(2):
            x = FX[st] + mt * 4; w = FW[st] + jt * 4; c = acc(mt, jt)
            if mlp:
                a(f'v_mfma_f32_32x32x16_bf16 v[{c}:{c+15}], v[{w}:{w+3}], v[{x}:{x+3}], v[{c}:{c+15}]')
            else:
                a(f'v_mfma_f32_32x32x16_bf16 v[{c}:{c+15}], v[{x}:{x+3}], v[{w}:{w+3}], v[{c}:{c+15}]')

def k1_mainloop(a, mlp):
    NS = 10
    for s in range(NS):
        a(f's_waitcnt vmcnt({12 if s < NS - 1 else 0})')
        a('s_barrier')
        n = k1_reads(a, s, 0, 0, mlp)
        if s + 2 < NS:
            k1_dma(a, s + 2, mlp)
        for ks in range(4):
            st = ks & 1
            if ks < 3:
                n2 = k1_reads(a, s, ks + 1, st ^ 1, mlp)
                a(f's_waitcnt lgkmcnt({n2})')
            else:
                a('s_waitcnt lgkmcnt(0)')
            k1_mfma(a, st, mlp)

def gen_k1(a):
    a.raw('.p2align 8')
    a.label('k1_kernel')
    a('s_cmp_ge_u32 s2, 256')
    a('s_cbranch_scc1 K1_END')
    a(f's_load_dwordx2 s[4:5], s[0:1], {KA["x"]}')
    a(f's_load_dwordx2 s[6:7], s[0:1], {KA["ws"]}')
    a('v_lshrrev_b32 v2, 6, v0')
    a('v_and_b32 v1, 63, v0')
    a('v_readfirstlane_b32 s3, v2')
    a('s_waitcnt lgkmcnt(0)')
    srd(a, 8, 4, 5, 2621440)
    srd(a, 20, 6, 7, WS_SIZE)
    a('s_cmp_ge_u32 s2, 176')
    a('s_cbranch_scc1 K1_SIDE')
    a('s_and_b32 s24, s2, 15')
    a('s_lshr_b32 s25, s2, 4')
    a('s_lshl_b32 s28, s3, 12')
    a('s_lshl_b32 s29, s3, 13')
    for i in range(128):
        a(f'v_mov_b32 v{ACC + i}, 0')
    a('v_lshrrev_b32 v2, 3, v1')
    a('v_lshrrev_b32 v3, 4, v1')
    a('v_and_b32 v20, 7, v1')
    a('v_xor_b32 v21, v20, v3')
    a('v_xor_b32 v22, 4, v21')
    a('v_lshlrev_b32 v21, 4, v21')
    a('v_lshlrev_b32 v22, 4, v22')
    a('v_and_b32 v23, 31, v1')
    a('v_lshlrev_b32 v23, 7, v23')
    a('v_lshrrev_b32 v72, 5, v1')
    a('v_bfe_u32 v73, v1, 1, 3')
    for ks in range(4):
        a(f'v_add_u32 v74, {2 * ks}, v72')
        a('v_xor_b32 v74, v74, v73')
        a(f'v_lshl_add_u32 v{8 + ks}, v74, 4, v23')
    a('s_cmp_ge_u32 s25, 5')
    a('s_cbranch_scc1 K1_MLP')

    a(f's_load_dwordx4 s[32:35], s[0:1], {KA["bre"]}')
    a(f's_load_dwordx4 s[36:39], s[0:1], {KA["lre"]}')
    a(f's_load_dwordx2 s[40:41], s[0:1], {KA["logdt"]}')
    a('v_and_b32 v74, 3, v2')
    a('v_lshl_add_u32 v74, v72, 6, v74')
    a('s_movk_i32 s30, 1280')
    a('v_mul_lo_u32 v74, v74, s30')
    a('v_add_u32 v4, v74, v21')
    a('v_add_u32 v5, v74, v22')
    a('v_mul_lo_u32 v74, v2, s30')
    a('v_add_u32 v6, v74, v21')
    a('v_add_u32 v7, v74, v22')
    a('s_lshl_b32 s26, s24, 7')
    a('s_lshl_b32 s30, s3, 4')
    a('s_add_u32 s26, s26, s30')
    a('s_mul_i32 s26, s26, 1280')
    a('s_lshl_b32 s42, s25, 7')
    a('s_lshl_b32 s30, s3, 5')
    a('s_add_u32 s42, s42, s30')
    a('s_mul_i32 s27, s42, 1280')
    a(f's_add_u32 s30, s29, {WB[0]}')
    for ks in range(4):
        a(f'v_add_u32 v{12 + ks}, s30, v{8 + ks}')
        a(f'v_add_u32 v{16 + ks}, 0x10000, v{12 + ks}')
    a('v_and_b32 v75, 31, v1')
    a('v_add_u32 v75, s42, v75')
    a('v_lshlrev_b32 v76, 1, v75')
    a('s_waitcnt lgkmcnt(0)')
    srd(a, 12, 32, 33, 819200)
    srd(a, 16, 34, 35, 819200)
    a('global_load_ushort v77, v76, s[36:37]')
    a('global_load_ushort v78, v76, s[38:39]')
    a('global_load_ushort v79, v76, s[40:41]')
    k1_dma(a, 0, False)
    k1_dma(a, 1, False)
    a('s_waitcnt vmcnt(24)')
    lam_compute(a, 77, 78, 79, 80, 81, 82, 83)
    k1_mainloop(a, False)
    a('s_nop 15')
    def rr(j): return acc(j >> 4, 0) + (j & 15)
    def ri(j): return acc(j >> 4, 1) + (j & 15)
    for j in range(1, 64):
        a(f'v_fma_f32 v{rr(j)}, -v81, v{ri(j-1)}, v{rr(j)}')
        a(f'v_fma_f32 v{ri(j)}, v81, v{rr(j-1)}, v{ri(j)}')
        a(f'v_fma_f32 v{rr(j)}, v80, v{rr(j-1)}, v{rr(j)}')
        a(f'v_fma_f32 v{ri(j)}, v80, v{ri(j-1)}, v{ri(j)}')
    a('s_movk_i32 s30, 20480')
    a('v_mul_lo_u32 v82, v72, s30')
    a('v_add_u32 v82, v82, v75')
    a('v_lshlrev_b32 v82, 4, v82')
    a(f'v_add_u32 v82, {SLOC}, v82')
    a('s_mul_i32 s31, s24, 655360')
    for mt in range(4):
        for aa in range(4):
            for part in range(2):
                r = acc(mt, part) + aa * 4
                a(f's_add_u32 s30, s31, {(4 * mt + aa) * 20480 + part * 10240}')
                a(f'buffer_store_dwordx4 v[{r}:{r+3}], v82, s[20:23], s30 offen')
    a('s_movk_i32 s30, 1280')
    a('v_mul_lo_u32 v83, v72, s30')
    a('v_add_u32 v83, v83, v75')
    a('v_lshlrev_b32 v83, 2, v83')
    a(f'v_add_u32 v83, {EEND}, v83')
    a('s_mul_i32 s31, s24, 10240')
    a(f'buffer_store_dword v{rr(63)}, v83, s[20:23], s31 offen')
    a(f'buffer_store_dword v{ri(63)}, v83, s[20:23], s31 offen offset:2560')
    a('s_branch K1_END')

    a.label('K1_MLP')
    a(f's_load_dwordx4 s[32:35], s[0:1], {KA["w1"]}')
    a('s_sub_u32 s25, s25, 5')
    a('s_movk_i32 s30, 1280')
    a('v_mul_lo_u32 v74, v2, s30')
    a('v_add_u32 v4, v74, v21')
    a('v_add_u32 v5, v74, v22')
    a('v_and_b32 v74, 31, v1')
    a('v_lshlrev_b32 v75, 2, v72')
    a('v_xor_b32 v74, v74, v75')
    a('v_xor_b32 v75, 8, v74')
    a('s_movk_i32 s30, 3072')
    a('v_mul_lo_u32 v76, v72, s30')
    a('v_lshl_add_u32 v6, v74, 4, v76')
    a('v_lshl_add_u32 v7, v75, 4, v76')
    a('s_lshl_b32 s26, s24, 7')
    a('s_lshl_b32 s30, s3, 5')
    a('s_add_u32 s26, s26, s30')
    a('s_mul_i32 s26, s26, 1280')
    a('s_mul_i32 s27, s3, 49152')
    a('s_lshl_b32 s30, s25, 9')
    a('s_add_u32 s27, s27, s30')
    a('v_bfe_u32 v74, v1, 2, 2')
    a('v_lshl_add_u32 v75, v72, 3, v74')
    a('v_lshlrev_b32 v75, 9, v75')
    a('v_bfe_u32 v76, v1, 1, 1')
    a('v_lshl_add_u32 v75, v76, 3, v75')
    a('v_and_b32 v76, 1, v3')
    a('v_and_b32 v77, 1, v1')
    a('v_lshl_add_u32 v76, v76, 1, v77')
    a('s_lshl_b32 s30, s3, 3')
    a('v_add_u32 v76, s30, v76')
    a('v_lshlrev_b32 v74, 2, v74')
    for jt in range(2):
        a(f'v_add_u32 v77, {4 * jt}, v76')
        a('v_xor_b32 v77, v77, v74')
        a(f'v_lshl_add_u32 v{12 + jt}, v77, 4, v75')
        a(f'v_add_u32 v{12 + jt}, {WB[0]}, v{12 + jt}')
        a(f'v_add_u32 v{16 + jt}, 0x10000, v{12 + jt}')
    a('s_lshl_b32 s42, s25, 8')
    a('s_lshl_b32 s30, s3, 6')
    a('s_add_u32 s42, s42, s30')
    a('v_lshlrev_b32 v74, 4, v72')
    a('s_lshl_b32 s30, s42, 1')
    a('v_add_u32 v74, s30, v74')
    a('s_waitcnt lgkmcnt(0)')
    srd(a, 12, 32, 33, 1966080)
    for jt in range(2):
        for ap in range(2):
            r = 96 + (jt * 2 + ap) * 4
            a(f'global_load_dwordx4 v[{r}:{r+3}], v74, s[34:35] offset:{(32 * jt + 16 * ap) * 2}')
    k1_dma(a, 0, True)
    k1_dma(a, 1, True)
    mish_consts(a)
    k1_mainloop(a, True)
    for jt in range(2):
        for ap in range(2):
            for i in range(4):
                src = 96 + (jt * 2 + ap) * 4 + i
                d = 24 + jt * 16 + ap * 8 + i * 2
                a(f'v_lshlrev_b32 v{d}, 16, v{src}')
                a(f'v_and_b32 v{d+1}, 0xffff0000, v{src}')
    a('v_bfe_u32 v74, v1, 4, 1')
    a('v_lshlrev_b32 v74, 10, v74')
    a('v_and_b32 v75, 15, v1')
    a('v_lshl_add_u32 v74, v75, 4, v74')
    a('v_lshl_add_u32 v74, v72, 8, v74')
    a('s_mul_i32 s31, s24, 393216')
    a('s_lshl_b32 s30, s42, 7')
    a('s_add_u32 s31, s31, s30')
    if ACTF: a(f's_add_u32 s31, s31, {ACTF}')
    T = list(range(56, 64))
    for mt in range(4):
        for jt in range(2):
            for ap in range(2):
                outr = 64 + ((jt * 2 + ap) & 1) * 4
                for i in range(4):
                    c0 = acc(mt, jt) + ap * 8 + i * 2
                    b0 = 24 + jt * 16 + ap * 8 + i * 2
                    round_bf16_pair(a, c0, c0 + 1, T[0])
                    a(f'v_add_f32 v{c0}, v{c0}, v{b0}')
                    a(f'v_add_f32 v{c0+1}, v{c0+1}, v{b0+1}')
                    round_bf16_pair(a, c0, c0 + 1, T[0])
                    mish_pair(a, c0, c0 + 1, outr + i, T)
                off = (mt >> 1) * 196608 + jt * 4096 + 2 * (mt & 1) * 1024 + ap * 512
                a(f's_add_u32 s30, s31, {off}')
                a(f'buffer_store_dwordx4 v[{outr}:{outr+3}], v74, s[20:23], s30 offen')
    a('s_branch K1_END')

    a.label('K1_SIDE')
    a('s_sub_u32 s24, s2, 176')
    a('s_lshl_b32 s24, s24, 2')
    a('s_add_u32 s24, s24, s3')
    a(f's_load_dwordx2 s[32:33], s[0:1], {KA["gw"]}')
    a(f's_load_dwordx2 s[34:35], s[0:1], {KA["w2"]}')
    a(f's_load_dwordx4 s[36:39], s[0:1], {KA["cre"]}')
    a('v_lshlrev_b32 v2, 2, v1')
    a('s_waitcnt lgkmcnt(0)')
    for j in range(5):
        a(f'global_load_dword v{10 + j}, v2, s[32:33] offset:{256 * j}')
    a('s_waitcnt vmcnt(0)')
    for j in range(5):
        a(f'v_lshlrev_b32 v{20 + 2 * j}, 16, v{10 + j}')
        a(f'v_and_b32 v{21 + 2 * j}, 0xffff0000, v{10 + j}')
    a('s_mov_b32 s25, s24')
    a(f's_mov_b32 s60, {f2h(-1.4426950408889634)}')
    a.label('K1_GATE_LOOP')
    a('s_mul_i32 s30, s25, 1280')
    for j in range(5):
        a(f'buffer_load_dword v{10 + j}, v2, s[8:11], s30 offen offset:{256 * j}')
    a('s_waitcnt vmcnt(0)')
    a('v_mov_b32 v40, 0')
    for j in range(5):
        a(f'v_lshlrev_b32 v30, 16, v{10 + j}')
        a(f'v_and_b32 v31, 0xffff0000, v{10 + j}')
        a(f'v_mul_f32 v30, v30, v{20 + 2 * j}')
        a(f'v_mul_f32 v31, v31, v{21 + 2 * j}')
        round_bf16_pair(a, 30, 31, 32)
        a('v_add_f32 v40, v40, v30')
        a('v_add_f32 v40, v40, v31')
    a('s_nop 1')
    a('v_add_f32_dpp v40, v40, v40 row_shr:1 row_mask:0xf bank_mask:0xf')
    a('s_nop 1')
    a('v_add_f32_dpp v40, v40, v40 row_shr:2 row_mask:0xf bank_mask:0xf')
    a('s_nop 1')
    a('v_add_f32_dpp v40, v40, v40 row_shr:4 row_mask:0xf bank_mask:0xf')
    a('s_nop 1')
    a('v_add_f32_dpp v40, v40, v40 row_shr:8 row_mask:0xf bank_mask:0xf')
    a('s_nop 1')
    a('v_readlane_b32 s40, v40, 15')
    a('v_readlane_b32 s41, v40, 31')
    a('v_readlane_b32 s42, v40, 47')
    a('v_readlane_b32 s43, v40, 63')
    a('s_nop 1')
    a('v_mov_b32 v41, s40')
    a('v_add_f32 v41, s41, v41')
    a('v_add_f32 v41, s42, v41')
    a('v_add_f32 v41, s43, v41')
    a('v_cvt_pk_bf16_f32 v41, v41, v41')
    a('v_lshlrev_b32 v41, 16, v41')
    a('v_mul_f32 v42, s60, v41')
    a('v_exp_f32 v42, v42')
    a('s_nop 0')
    a('v_add_f32 v42, 1.0, v42')
    a('v_rcp_f32 v42, v42')
    a('s_nop 0')
    a('v_cvt_pk_bf16_f32 v42, v42, v42')
    a('v_lshlrev_b32 v42, 16, v42')
    a('v_sub_f32 v43, 1.0, v42')
    a('v_cvt_pk_bf16_f32 v43, v43, v43')
    a('v_lshlrev_b32 v43, 16, v43')
    a('s_lshl_b32 s30, s25, 3')
    a(f's_add_u32 s30, s30, {GATE}')
    a('v_mov_b32 v44, 0')
    a('s_mov_b64 s[44:45], exec')
    a('s_mov_b64 exec, 1')
    a('buffer_store_dwordx2 v[42:43], v44, s[20:23], s30 offen')
    a('s_mov_b64 exec, s[44:45]')
    a('s_add_u32 s25, s25, 320')
    a('s_cmp_lt_u32 s25, 2048')
    a('s_cbranch_scc1 K1_GATE_LOOP')
    srd(a, 12, 34, 35, 1966080)
    a('v_and_b32 v3, 15, v1')
    a('v_lshrrev_b32 v4, 4, v1')
    a('s_movk_i32 s30, 10240')
    a('v_mul_lo_u32 v4, v4, s30')
    a('v_lshl_add_u32 v4, v3, 1, v4')
    a('v_lshlrev_b32 v5, 4, v1')
    a('s_mov_b32 s25, s24')
    a.label('K1_W2_LOOP')
    a('s_mov_b32 s30, 0x01111112')
    a('s_mul_hi_u32 s40, s25, s30')
    a('s_mul_i32 s41, s40, 240')
    a('s_sub_u32 s41, s25, s41')
    a('s_mov_b32 s30, 0x33333334')
    a('s_mul_hi_u32 s42, s41, s30')
    a('s_mul_i32 s43, s42, 5')
    a('s_sub_u32 s43, s41, s43')
    a('s_mul_i32 s40, s40, 160')
    a('s_lshl_b32 s43, s43, 5')
    a('s_mul_i32 s42, s42, 40960')
    a('s_add_u32 s30, s40, s43')
    a('s_add_u32 s30, s30, s42')
    for i in range(8):
        if i:
            a('s_add_u32 s30, s30, 1280')
        a(f'buffer_load_ushort v{16 + i}, v4, s[12:15], s30 offen')
    a('s_lshl_b32 s30, s25, 10')
    a(f's_add_u32 s30, s30, {W2F}')
    a('s_waitcnt vmcnt(0)')
    for i in range(4):
        a(f'v_lshl_or_b32 v{8 + i}, v{17 + 2 * i}, 16, v{16 + 2 * i}')
    a('buffer_store_dwordx4 v[8:11], v5, s[20:23], s30 offen')
    a('s_add_u32 s25, s25, 320')
    a('s_cmp_lt_u32 s25, 1920')
    a('s_cbranch_scc1 K1_W2_LOOP')
    srd(a, 12, 36, 37, 819200)
    srd(a, 16, 38, 39, 819200)
    a('s_movk_i32 s30, 1280')
    a('v_mul_lo_u32 v4, v3, s30')
    a('v_lshrrev_b32 v6, 4, v1')
    a('v_lshl_add_u32 v4, v6, 4, v4')
    a('s_mov_b32 s25, s24')
    a.label('K1_CF_LOOP')
    a('s_mov_b32 s30, 0x0147ae15')
    a('s_mul_hi_u32 s40, s25, s30')
    a('s_mul_i32 s41, s40, 200')
    a('s_sub_u32 s41, s25, s41')
    a('s_mov_b32 s30, 0x33333334')
    a('s_mul_hi_u32 s42, s41, s30')
    a('s_mul_i32 s43, s42, 5')
    a('s_sub_u32 s43, s41, s43')
    a('s_mul_i32 s40, s40, 102400')
    a('s_mul_i32 s43, s43, 20480')
    a('s_add_u32 s30, s40, s43')
    a('s_lshl_b32 s31, s25, 10')
    a(f's_add_u32 s31, s31, {CF}')
    a('s_cmp_ge_u32 s42, 20')
    a('s_cbranch_scc1 K1_CF_IM')
    a('s_lshl_b32 s42, s42, 6')
    a('s_add_u32 s30, s30, s42')
    a('buffer_load_dwordx4 v[8:11], v4, s[12:15], s30 offen')
    a('s_branch K1_CF_ST')
    a.label('K1_CF_IM')
    a('s_sub_u32 s42, s42, 20')
    a('s_lshl_b32 s42, s42, 6')
    a('s_add_u32 s30, s30, s42')
    a('buffer_load_dwordx4 v[8:11], v4, s[16:19], s30 offen')
    a.label('K1_CF_ST')
    a('s_waitcnt vmcnt(0)')
    a('buffer_store_dwordx4 v[8:11], v5, s[20:23], s31 offen')
    a('s_add_u32 s25, s25, 320')
    a('s_cmp_lt_u32 s25, 1600')
    a('s_cbranch_scc1 K1_CF_LOOP')
    a.label('K1_END')
    a('s_endpgm')

QACC = 176
def qacc(fa, fb): return QACC + (fa * 5 + fb) * 4
QD = 4
def qfr(st, i): return 16 + st * 36 + i * 4

def q_loads(a, st):
    for fa in range(4):
        r = qfr(st, fa)
        a(f'buffer_load_dwordx4 v[{r}:{r+3}], v2, s[20:23], s26 offen offset:{fa * 1024}')
    for fb in range(5):
        r = qfr(st, 4 + fb)
        if fb < 4:
            a(f'buffer_load_dwordx4 v[{r}:{r+3}], v2, s[20:23], s27 offen offset:{fb * 1024}')
        else:
            a(f'buffer_load_dwordx4 v[{r}:{r+3}], v3, s[20:23], s27 offen')
    a('s_add_u32 s26, s26, 4096')
    a('s_add_u32 s27, s27, 5120')

def q_gemm(a, KS, nKS, abase, bbase):
    a('v_lshlrev_b32 v2, 4, v1')
    a('v_add_u32 v3, 4096, v2')
    a(f's_mul_i32 s26, s24, {nKS}')
    a(f's_mul_i32 s30, s3, {KS}')
    a('s_add_u32 s26, s26, s30')
    a('s_lshl_b32 s26, s26, 12')
    a(f's_add_u32 s26, s26, {abase}')
    a(f's_mul_i32 s27, s25, {nKS}')
    a('s_add_u32 s27, s27, s30')
    a('s_mul_i32 s27, s27, 5120')
    a(f's_add_u32 s27, s27, {bbase}')
    for s in range(min(QD, KS)):
        q_loads(a, s)
    for i in range(80):
        a(f'v_mov_b32 v{QACC + i}, 0')
    for s in range(KS):
        st = s % QD
        inflight = min(QD, KS - s)
        a(f's_waitcnt vmcnt({9 * (inflight - 1)})')
        for fa in range(4):
            for fb in range(5):
                c = qacc(fa, fb); A = qfr(st, fa); B = qfr(st, 4 + fb)
                a(f'v_mfma_f32_16x16x32_bf16 v[{c}:{c+3}], v[{A}:{A+3}], v[{B}:{B+3}], v[{c}:{c+3}]')
        if s + QD < KS:
            q_loads(a, st)
    a('s_nop 7')
    a('s_mul_i32 s30, s3, 20480')
    a('v_add_u32 v4, s30, v2')
    for t in range(20):
        c = QACC + t * 4
        a(f'ds_write_b128 v4, v[{c}:{c+3}] offset:{t * 1024}')
    a('s_waitcnt lgkmcnt(0)')
    a('s_barrier')
    a('s_mul_i32 s30, s3, 5120')
    a('v_add_u32 v4, s30, v2')
    a('v_add_u32 v5, 40960, v4')
    for u in range(4):
        for fb in range(5):
            r = 16 + (u * 5 + fb) * 4
            a(f'ds_read_b128 v[{r}:{r+3}], v{4 + (u >> 1)} offset:{(u & 1) * 20480 + fb * 1024}')
    a('s_waitcnt lgkmcnt(0)')
    for fb in range(5):
        for r in range(4):
            d = 16 + fb * 4 + r
            a(f'v_add_f32 v{d}, v{d}, v{d + 20}')
            a(f'v_add_f32 v{d + 40}, v{d + 40}, v{d + 60}')
            a(f'v_add_f32 v{d}, v{d}, v{d + 40}')

def common_prologue(a, endlabel, nwg):
    a(f's_cmp_ge_u32 s2, {nwg}')
    a(f's_cbranch_scc1 {endlabel}')
    a(f's_load_dwordx2 s[6:7], s[0:1], {KA["ws"]}')
    a('v_lshrrev_b32 v2, 6, v0')
    a('v_and_b32 v1, 63, v0')
    a('v_readfirstlane_b32 s3, v2')
    a('s_waitcnt lgkmcnt(0)')
    srd(a, 20, 6, 7, WS_SIZE)

def gate_loads(a, dst):
    a('s_lshl_b32 s30, s24, 6')
    a('s_lshl_b32 s31, s3, 4')
    a('s_add_u32 s30, s30, s31')
    a('v_lshrrev_b32 v5, 4, v1')
    a('v_lshlrev_b32 v5, 2, v5')
    a('v_add_u32 v5, s30, v5')
    a('v_lshlrev_b32 v6, 3, v5')
    a(f'v_add_u32 v6, {GATE}, v6')
    a(f'buffer_load_dwordx4 v[{dst}:{dst+3}], v6, s[20:23], 0 offen')
    a(f'buffer_load_dwordx4 v[{dst+4}:{dst+7}], v6, s[20:23], 0 offen offset:16')

def ob_addr(a):
    a('s_lshl_b32 s30, s2, 2')
    a('s_add_u32 s30, s30, s3')
    a('s_mul_i32 s30, s30, 2560')
    a(f's_add_u32 s30, s30, {OB}')
    a('v_lshlrev_b32 v7, 3, v1')
    a('v_add_u32 v7, s30, v7')

def gen_k2(a):
    a.raw('.p2align 8')
    a.label('k2_kernel')
    common_prologue(a, 'K2_END', 416)
    a('s_cmp_ge_u32 s2, 256')
    a('s_cbranch_scc1 K2_FIX')
    a('s_and_b32 s24, s2, 31')
    a('s_lshr_b32 s25, s2, 5')
    q_gemm(a, 12, 48, ACTF, W2F)
    gate_loads(a, 40)
    ob_addr(a)
    a('s_waitcnt vmcnt(0)')
    for fb in range(5):
        d = 16 + fb * 4
        round_bf16_pair(a, d, d + 1, 60)
        round_bf16_pair(a, d + 2, d + 3, 60)
        for r in range(4):
            a(f'v_mul_f32 v{d + r}, v{d + r}, v{41 + 2 * r}')
        a(f'v_cvt_pk_bf16_f32 v{62 + 2 * fb}, v{d}, v{d + 1}')
        a(f'v_cvt_pk_bf16_f32 v{63 + 2 * fb}, v{d + 2}, v{d + 3}')
        a(f'buffer_store_dwordx2 v[{62 + 2 * fb}:{63 + 2 * fb}], v7, s[20:23], 0 offen offset:{fb * 512}')
    a('s_branch K2_END')

    a.label('K2_FIX')
    a('s_sub_u32 s24, s2, 256')
    a('s_mov_b32 s30, 0x33333334')
    a('s_mul_hi_u32 s25, s24, s30')
    a('s_mul_i32 s30, s25, 5')
    a('s_sub_u32 s24, s24, s30')
    a(f's_load_dwordx4 s[36:39], s[0:1], {KA["lre"]}')
    a(f's_load_dwordx2 s[40:41], s[0:1], {KA["logdt"]}')
    a('v_lshrrev_b32 v2, 4, v0')
    a('v_and_b32 v3, 15, v0')
    a('s_lshl_b32 s30, s25, 4')
    a('v_add_u32 v4, s30, v2')
    a('s_movk_i32 s30, 1280')
    a('v_mul_lo_u32 v4, v4, s30')
    a('s_lshl_b32 s31, s24, 7')
    a('v_lshl_add_u32 v4, v3, 3, v4')
    a('v_add_u32 v4, s31, v4')
    a('v_lshlrev_b32 v4, 4, v4')
    a(f'v_add_u32 v4, {SLOC}, v4')
    a('s_movk_i32 s30, 10240')
    for ch in range(8):
        a(f'buffer_load_dwordx4 v[{128 + ch * 4}:{131 + ch * 4}], v4, s[20:23], 0 offen offset:{ch * 16}')
    for ch in range(8):
        a(f'buffer_load_dwordx4 v[{160 + ch * 4}:{163 + ch * 4}], v4, s[20:23], s30 offen offset:{ch * 16}')
    a('s_cmp_ge_u32 s3, 2')
    a('s_cbranch_scc1 K2_FIX_P2')
    a('v_add_u32 v5, s31, v0')
    a('v_lshlrev_b32 v6, 1, v5')
    a('s_waitcnt lgkmcnt(0)')
    a('global_load_ushort v10, v6, s[36:37]')
    a('global_load_ushort v11, v6, s[38:39]')
    a('global_load_ushort v12, v6, s[40:41]')
    a('v_lshlrev_b32 v6, 2, v5')
    a(f'v_add_u32 v6, {EEND}, v6')
    for c in range(31):
        a(f's_mov_b32 s30, {c * 5120}')
        a(f'buffer_load_dword v{64 + 2 * c}, v6, s[20:23], s30 offen')
        a(f'buffer_load_dword v{65 + 2 * c}, v6, s[20:23], s30 offen offset:2560')
    a('s_waitcnt vmcnt(62)')
    lam_compute(a, 10, 11, 12, 13, 14, 15, 16)
    a('v_add_f32 v15, -1.0, v13')
    a('v_mul_f32 v16, v10, v10')
    a('v_fma_f32 v16, v11, v11, v16')
    a('v_rcp_f32 v16, v16')
    a('v_mul_f32 v17, v15, v10')
    a('v_fma_f32 v17, v14, v11, v17')
    a('v_mul_f32 v18, v14, v10')
    a('v_fma_f32 v18, -v15, v11, v18')
    a('v_add_f32 v16, v16, v16')
    a('v_mul_f32 v17, v17, v16')
    a('v_mul_f32 v18, v18, v16')
    def csq(dr, di, sr, si):
        a(f'v_mul_f32 v24, v{si}, v{si}')
        a(f'v_mul_f32 v25, v{sr}, v{si}')
        a(f'v_fma_f32 v{dr}, v{sr}, v{sr}, -v24')
        a(f'v_add_f32 v{di}, v25, v25')
    csq(19, 20, 13, 14)
    csq(21, 22, 19, 20)
    csq(19, 20, 21, 22)
    csq(19, 20, 19, 20)
    csq(19, 20, 19, 20)
    csq(19, 20, 19, 20)
    a('v_mov_b32 v26, 0')
    a('v_mov_b32 v27, 0')
    a('s_waitcnt vmcnt(0)')
    for c in range(31):
        a(f's_cmp_le_u32 s25, {c}')
        a('s_cbranch_scc1 K2_FIX_CARRY_DONE')
        a(f'v_fma_f32 v{64 + 2 * c}, -v20, v27, v{64 + 2 * c}')
        a(f'v_fma_f32 v{65 + 2 * c}, v20, v26, v{65 + 2 * c}')
        a(f'v_fma_f32 v28, v19, v26, v{64 + 2 * c}')
        a(f'v_fma_f32 v27, v19, v27, v{65 + 2 * c}')
        a('v_mov_b32 v26, v28')
    a.label('K2_FIX_CARRY_DONE')
    a('v_mul_f32 v28, v14, v27')
    a('v_mul_f32 v29, v14, v26')
    a('v_fma_f32 v30, v13, v26, -v28')
    a('v_fma_f32 v31, v13, v27, v29')
    a('v_lshlrev_b32 v6, 3, v0')
    for q in range(16):
        a(f'ds_write_b64 v6, v[30:31] offset:{q * 1024}')
        if q < 15:
            a('v_mul_f32 v28, v22, v31')
            a('v_mul_f32 v29, v22, v30')
            a('v_fma_f32 v32, v21, v30, -v28')
            a('v_fma_f32 v31, v21, v31, v29')
            a('v_mov_b32 v30, v32')
    a('v_mov_b32 v32, v13')
    a('v_mov_b32 v33, v14')
    a('v_mov_b32 v34, v17')
    a('v_mov_b32 v35, v18')
    a('v_lshlrev_b32 v6, 4, v0')
    a('ds_write_b128 v6, v[32:35] offset:16384')
    a.label('K2_FIX_P2')
    a('s_waitcnt lgkmcnt(0)')
    a('s_barrier')
    a('v_lshlrev_b32 v5, 10, v2')
    a('v_lshl_add_u32 v5, v3, 6, v5')
    a('v_lshlrev_b32 v6, 7, v3')
    for i in range(4):
        a(f'ds_read_b128 v[{16 + 4 * i}:{19 + 4 * i}], v5 offset:{16 * i}')
    for ch in range(8):
        a(f'ds_read_b128 v[{32 + 4 * ch}:{35 + 4 * ch}], v6 offset:{16384 + 16 * ch}')
    a('s_mul_i32 s30, s25, 40')
    a('s_lshl_b32 s31, s24, 2')
    a('s_add_u32 s30, s30, s31')
    a('v_lshrrev_b32 v7, 2, v3')
    a('v_add_u32 v7, s30, v7')
    a('v_lshrrev_b32 v8, 2, v2')
    a('v_lshl_add_u32 v7, v7, 2, v8')
    a('v_lshlrev_b32 v7, 10, v7')
    a('v_and_b32 v8, 3, v2')
    a('v_lshl_add_u32 v7, v8, 6, v7')
    a('v_and_b32 v8, 3, v3')
    a('v_lshl_add_u32 v7, v8, 8, v7')
    a(f'v_add_u32 v7, {HF}, v7')
    a('s_mov_b32 s30, 81920')
    a('s_waitcnt vmcnt(0) lgkmcnt(0)')
    for ch in range(8):
        gr = 16 + 2 * ch; gi = gr + 1
        lr = 32 + 4 * ch; li = lr + 1; cr = lr + 2; ci = lr + 3
        for j in range(4):
            sr = 128 + ch * 4 + j; si = 160 + ch * 4 + j
            a(f'v_add_f32 v{sr}, v{sr}, v{gr}')
            a(f'v_add_f32 v{si}, v{si}, v{gi}')
            a(f'v_mul_f32 v8, v{ci}, v{si}')
            a(f'v_mul_f32 v9, v{ci}, v{sr}')
            a(f'v_fma_f32 v{64 + j * 8 + ch}, v{cr}, v{sr}, -v8')
            a(f'v_fma_f32 v{96 + j * 8 + ch}, -v{cr}, v{si}, -v9')
            if j < 3:
                a(f'v_mul_f32 v8, v{li}, v{gi}')
                a(f'v_mul_f32 v9, v{li}, v{gr}')
                a(f'v_fma_f32 v10, v{lr}, v{gr}, -v8')
                a(f'v_fma_f32 v{gi}, v{lr}, v{gi}, v9')
                a(f'v_mov_b32 v{gr}, v10')
    for j in range(4):
        for part in range(2):
            b0 = (64 if part == 0 else 96) + j * 8
            o = 128 + (j * 2 + part) * 4
            for i in range(4):
                a(f'v_cvt_pk_bf16_f32 v{o + i}, v{b0 + 2 * i}, v{b0 + 2 * i + 1}')
            so = '0' if part == 0 else 's30'
            a(f'buffer_store_dwordx4 v[{o}:{o+3}], v7, s[20:23], {so} offen offset:{j * 16}')
    a.label('K2_END')
    a('s_endpgm')

def gen_k3(a):
    a.raw('.p2align 8')
    a.label('k3_kernel')
    common_prologue(a, 'K3_END', 256)
    a(f's_load_dwordx2 s[4:5], s[0:1], {KA["x"]}')
    a(f's_load_dwordx2 s[32:33], s[0:1], {KA["dskip"]}')
    a(f's_load_dwordx2 s[34:35], s[0:1], {KA["out"]}')
    a('s_and_b32 s24, s2, 31')
    a('s_lshr_b32 s25, s2, 5')
    q_gemm(a, 10, 40, HF, CF)
    srd(a, 8, 4, 5, 2621440)
    srd(a, 12, 34, 35, 5242880)
    gate_loads(a, 40)
    ob_addr(a)
    for fb in range(5):
        a(f'buffer_load_dwordx2 v[{62 + 2 * fb}:{63 + 2 * fb}], v7, s[20:23], 0 offen offset:{fb * 512}')
    a('s_mul_i32 s30, s25, 80')
    a('v_and_b32 v8, 15, v1')
    a('v_add_u32 v8, s30, v8')
    a('v_lshlrev_b32 v9, 1, v8')
    for fb in range(5):
        a(f'global_load_ushort v{50 + fb}, v9, s[32:33] offset:{32 * fb}')
    a('s_movk_i32 s30, 1280')
    a('v_mul_lo_u32 v10, v5, s30')
    a('v_add_u32 v10, v10, v9')
    for r in range(4):
        a(f's_mov_b32 s30, {r * 1280}')
        for fb in range(5):
            a(f'buffer_load_ushort v{80 + fb * 4 + r}, v10, s[8:11], s30 offen offset:{32 * fb}')
    a('v_lshlrev_b32 v11, 1, v10')
    a('s_waitcnt vmcnt(0)')
    for fb in range(5):
        a(f'v_lshlrev_b32 v{50 + fb}, 16, v{50 + fb}')
        for r in range(4):
            x = 80 + fb * 4 + r
            a(f'v_lshlrev_b32 v{x}, 16, v{x}')
            a(f'v_mul_f32 v{x}, v{x}, v{50 + fb}')
        round_bf16_pair(a, 80 + fb * 4, 81 + fb * 4, 60)
        round_bf16_pair(a, 82 + fb * 4, 83 + fb * 4, 60)
        for r in range(4):
            d = 16 + fb * 4 + r; x = 80 + fb * 4 + r
            a(f'v_add_f32 v{d}, v{d}, v{x}')
            src = 62 + 2 * fb + (r >> 1)
            if r & 1: a(f'v_and_b32 v60, 0xffff0000, v{src}')
            else: a(f'v_lshlrev_b32 v60, 16, v{src}')
            a(f'v_mul_f32 v{d}, v{40 + 2 * r}, v{d}')
            a(f'v_add_f32 v{d}, v{d}, v60')
    for r in range(4):
        a(f's_mov_b32 s30, {r * 2560}')
        for fb in range(5):
            a(f'buffer_store_dword v{16 + fb * 4 + r}, v11, s[12:15], s30 offen offset:{64 * fb}')
    a.label('K3_END')
    a('s_endpgm')

def desc(name, vgpr=256):
    return f'''.p2align 6
.amdhsa_kernel {name}
  .amdhsa_next_free_vgpr {vgpr}
  .amdhsa_next_free_sgpr 102
  .amdhsa_accum_offset 256
  .amdhsa_group_segment_fixed_size 0
  .amdhsa_kernarg_size 136
  .amdhsa_user_sgpr_count 2
  .amdhsa_user_sgpr_kernarg_segment_ptr 1
  .amdhsa_system_sgpr_workgroup_id_x 1
  .amdhsa_float_denorm_mode_32 3
.end_amdhsa_kernel
'''

def main(out):
    hdr = open(f'cdna_kernels/{NAME}.s.ref').read().split('; Override launch')[0]
    a.raw(hdr.rstrip('\n'))
    a.raw(f'; @launch kernel=k1_kernel grid=(256,1,1) block=(256,1,1) lds={K1_LDS}')
    a.raw('; @launch kernel=k2_kernel grid=(416,1,1) block=(256,1,1) lds=81920')
    a.raw('; @launch kernel=k3_kernel grid=(256,1,1) block=(256,1,1) lds=81920')
    a.raw('.amdgcn_target "amdgcn-amd-amdhsa--gfx950"')
    a.raw('.text')
    for k in ('k1_kernel', 'k2_kernel', 'k3_kernel'):
        a.raw(f'.globl {k}')
        a.raw(f'.type {k},@function')
    gen_k1(a); gen_k2(a); gen_k3(a)
    a.raw('.section .rodata,"a"')
    for k in ('k1_kernel', 'k2_kernel', 'k3_kernel'):
        a.raw(desc(k))
    t = a.text()
    open(out, 'w').write(t)
    w = lint(t)
    for x in w[:40]: print('HAZARD', x)
    print('lines', len(t.split('\n')), 'bytes', len(t), 'hazards', len(w))

if __name__ == '__main__':
    main(sys.argv[1] if len(sys.argv) > 1 else f'cdna_kernels/{NAME}.s')
```

```python
import sys, struct
from asmlib import Asm, lint

NAME = 'gated_mix__ssm_conv_s5__dense_activation_mish__prompt'
def f2h(x): return '0x%08x' % struct.unpack('<I', struct.pack('<f', x))[0]

ACTF = 0x0000000
HF   = 0x0800000
W2F  = 0x1000000
CF   = 0x1200000
SLOC = 0x1400000
EEND = 0x2000000
GATE = 0x2100000
OB   = 0x2200000
WS_SIZE = 0x4000000

KA = dict(x=0, lre=8, lim=16, bre=24, bim=32, cre=40, cim=48, logdt=56, dskip=64, bx=72, w1=80, b1=88, w2=96, gw=104, out=112, dbg=120, ws=128)

LOG2E = f2h(1.4426950408889634)
LN2 = f2h(0.6931471805599453)
M2LOG2E = f2h(-2 * 1.4426950408889634)
INV2PI = f2h(0.15915494309189535)

a = Asm()
import os
DIAG = int(os.environ.get('DIAG', '0'))
EXP = int(os.environ.get('EXP', '0'))
PF = int(os.environ.get('PF', '1'))
STAMP = 0x3000000
def stamp(a, i):
    if not DIAG: return
    a(f's_memrealtime s[{80 + 2 * i}:{81 + 2 * i}]')
    a('s_waitcnt lgkmcnt(0)')
def stamp_flush(a, kid, n):
    if not DIAG: return
    a('s_waitcnt vmcnt(0) lgkmcnt(0)')
    a(f's_memrealtime s[{80 + 2 * n}:{81 + 2 * n}]')
    a('s_waitcnt lgkmcnt(0)')
    lab = a.newlabel('LST')
    a('s_cmp_lg_u32 s3, 0')
    a(f's_cbranch_scc1 {lab}')
    a('s_lshl_b32 s30, s2, 6')
    a(f's_add_u32 s30, s30, {STAMP + kid * 65536}')
    a('v_mov_b32 v2, 0')
    a('s_mov_b64 exec, 1')
    for i in range(n + 1):
        a(f'v_mov_b32 v3, s{80 + 2 * i}')
        a(f'buffer_store_dword v3, v2, s[20:23], s30 offen offset:{4 * i}')
    a.label(lab)

def srd(a, s, lo, hi_reg, size):
    a(f's_mov_b32 s{s}, s{lo}')
    a(f's_and_b32 s{s+1}, s{hi_reg}, 0xffff')
    a(f's_mov_b32 s{s+2}, {size}')
    a(f's_mov_b32 s{s+3}, 0x00020000')

def round_bf16_pair(a, x0, x1, t):
    a(f'v_cvt_pk_bf16_f32 v{t}, v{x0}, v{x1}')
    a(f'v_lshlrev_b32 v{x0}, 16, v{t}')
    a(f'v_and_b32 v{x1}, 0xffff0000, v{t}')

def mish_consts(a):
    a(f's_mov_b32 s60, {LOG2E}')
    a(f's_mov_b32 s61, {LN2}')
    a(f's_mov_b32 s62, {M2LOG2E}')
    a(f's_mov_b32 s63, {f2h(2.0**-12)}')
    a(f's_mov_b32 s64, {f2h(2.0**-6)}')

def mish_pair(a, x0, x1, out, T, want_th=False):
    e0, e1, l0, l1, s0, s1, d0, d1 = T
    a(f'v_mul_f32 v{e0}, -abs(v{x0}), s60')
    a(f'v_mul_f32 v{e1}, -abs(v{x1}), s60')
    a(f'v_exp_f32 v{e0}, v{e0}')
    a(f'v_exp_f32 v{e1}, v{e1}')
    a(f'v_max_f32 v{s0}, 0, v{x0}')
    a(f'v_max_f32 v{s1}, 0, v{x1}')
    round_bf16_pair(a, e0, e1, d0)
    a(f'v_add_f32 v{l0}, 1.0, v{e0}')
    a(f'v_add_f32 v{l1}, 1.0, v{e1}')
    a(f'v_log_f32 v{l0}, v{l0}')
    a(f'v_log_f32 v{l1}, v{l1}')
    a(f'v_cmp_gt_f32 s[66:67], s63, v{e0}')
    a(f'v_cmp_gt_f32 s[68:69], s63, v{e1}')
    a(f'v_mul_f32 v{l0}, s61, v{l0}')
    a(f'v_mul_f32 v{l1}, s61, v{l1}')
    a(f'v_cndmask_b32 v{l0}, v{l0}, v{e0}, s[66:67]')
    a(f'v_cndmask_b32 v{l1}, v{l1}, v{e1}, s[68:69]')
    round_bf16_pair(a, l0, l1, d0)
    a(f'v_add_f32 v{s0}, v{s0}, v{l0}')
    a(f'v_add_f32 v{s1}, v{s1}, v{l1}')
    round_bf16_pair(a, s0, s1, d0)
    a(f'v_mul_f32 v{e0}, s62, v{s0}')
    a(f'v_mul_f32 v{e1}, s62, v{s1}')
    a(f'v_exp_f32 v{e0}, v{e0}')
    a(f'v_exp_f32 v{e1}, v{e1}')
    a(f'v_cmp_gt_f32 s[66:67], s64, v{s0}')
    a(f'v_cmp_gt_f32 s[68:69], s64, v{s1}')
    a(f'v_add_f32 v{d0}, 1.0, v{e0}')
    a(f'v_add_f32 v{d1}, 1.0, v{e1}')
    a(f'v_rcp_f32 v{d0}, v{d0}')
    a(f'v_rcp_f32 v{d1}, v{d1}')
    a(f'v_sub_f32 v{e0}, 1.0, v{e0}')
    a(f'v_sub_f32 v{e1}, 1.0, v{e1}')
    a(f'v_mul_f32 v{e0}, v{e0}, v{d0}')
    a(f'v_mul_f32 v{e1}, v{e1}, v{d1}')
    a(f'v_cndmask_b32 v{e0}, v{e0}, v{s0}, s[66:67]')
    a(f'v_cndmask_b32 v{e1}, v{e1}, v{s1}, s[68:69]')
    round_bf16_pair(a, e0, e1, d0)
    if want_th: return
    a(f'v_mul_f32 v{e0}, v{x0}, v{e0}')
    a(f'v_mul_f32 v{e1}, v{x1}, v{e1}')
    a(f'v_cvt_pk_bf16_f32 v{out}, v{e0}, v{e1}')

def lam_compute(a, vlre, vlim, vldt, lr, li, t0, t1):
    a(f's_mov_b32 s70, {LOG2E}')
    a(f's_mov_b32 s71, {INV2PI}')
    a(f'v_lshlrev_b32 v{vlre}, 16, v{vlre}')
    a(f'v_lshlrev_b32 v{vlim}, 16, v{vlim}')
    a(f'v_lshlrev_b32 v{vldt}, 16, v{vldt}')
    a(f'v_mul_f32 v{t0}, s70, v{vldt}')
    a(f'v_exp_f32 v{t0}, v{t0}')
    a(f's_nop 0')
    a(f'v_cvt_pk_bf16_f32 v{t0}, v{t0}, v{t0}')
    a(f'v_lshlrev_b32 v{vldt}, 16, v{t0}')
    a(f'v_mul_f32 v{t0}, v{vldt}, v{vlre}')
    a(f'v_mul_f32 v{t1}, v{vldt}, v{vlim}')
    a(f'v_mul_f32 v{t0}, s70, v{t0}')
    a(f'v_mul_f32 v{t1}, s71, v{t1}')
    a(f'v_exp_f32 v{t0}, v{t0}')
    a(f'v_fract_f32 v{t1}, v{t1}')
    a(f'v_cos_f32 v{lr}, v{t1}')
    a(f'v_sin_f32 v{li}, v{t1}')
    a(f's_nop 0')
    a(f'v_mul_f32 v{lr}, v{lr}, v{t0}')
    a(f'v_mul_f32 v{li}, v{li}, v{t0}')

LUTB = 0
XB = [16384, 32768, 49152]
WB = [65536, 98304, 131072]
K1_LDS = 163840
ACC = 128
def acc(mt, jt): return ACC + (mt * 2 + jt) * 16
FX = [24, 48]
FW = [40, 64]
LUT_LO2 = (117 << 7) << 1
LUT_N = 14 * 128 * 2

def k1_dma(a, s, mlp):
    if EXP == 2 and s > 1: return
    b = s % 3
    rowstep = 8 if mlp else 4
    for ii in range(4):
        a(f's_add_u32 m0, s28, {XB[b] + ii * 1024}')
        a(f's_add_u32 s30, s26, {ii * rowstep * 1280 + 128 * s}')
        a(f'buffer_load_dwordx4 v{4 + (ii & 1)}, s[8:11], s30 offen lds')
    for jj in range(8):
        a(f's_add_u32 m0, s29, {WB[b] + jj * 1024}')
        if mlp:
            a(f's_add_u32 s30, s27, {(64 * s + 2 * jj) * 3072}')
            a(f'buffer_load_dwordx4 v{6 + (jj & 1)}, s[12:15], s30 offen lds')
        else:
            a(f's_add_u32 s30, s27, {(jj & 3) * 8 * 1280 + 128 * s}')
            sr = 12 if jj < 4 else 16
            a(f'buffer_load_dwordx4 v{6 + (jj & 1)}, s[{sr}:{sr+3}], s30 offen lds')

def k1_reads(a, s, ks, st, mlp):
    b = s % 3
    n = 0
    for mt in range(4):
        r = FX[st] + mt * 4
        a(f'ds_read_b128 v[{r}:{r+3}], v{8 + ks} offset:{XB[b] + mt * 4096}'); n += 1
    for jt in range(2):
        r = FW[st] + jt * 4
        if mlp:
            base = 12 + jt if b < 2 else 16 + jt
            off = (b if b < 2 else 0) * 32768 + ks * 8192
            a(f'ds_read_b64_tr_b16 v[{r}:{r+1}], v{base} offset:{off}'); n += 1
            a(f'ds_read_b64_tr_b16 v[{r+2}:{r+3}], v{base} offset:{off + 2048}'); n += 1
        else:
            base = 12 + ks if b < 2 else 16 + ks
            off = (b if b < 2 else 0) * 32768 + jt * 4096
            a(f'ds_read_b128 v[{r}:{r+3}], v{base} offset:{off}'); n += 1
    return n

def k1_mfma(a, st, mlp):
    for mt in range(4):
        for jt in range(2):
            x = FX[st] + mt * 4; w = FW[st] + jt * 4; c = acc(mt, jt)
            if mlp:
                a(f'v_mfma_f32_32x32x16_bf16 v[{c}:{c+15}], v[{w}:{w+3}], v[{x}:{x+3}], v[{c}:{c+15}]')
            else:
                a(f'v_mfma_f32_32x32x16_bf16 v[{c}:{c+15}], v[{x}:{x+3}], v[{w}:{w+3}], v[{c}:{c+15}]')

NS = 10
def k1_mainloop(a, mlp):
    for s in range(NS):
        a('s_barrier')
        if s == 0: stamp(a, 1)
        if EXP == 1: continue
        n = k1_reads(a, s, 0, 0, mlp)
        for ks in range(4):
            st = ks & 1
            if ks < 3:
                n2 = k1_reads(a, s, ks + 1, st ^ 1, mlp)
                a(f's_waitcnt lgkmcnt({n2})')
            else:
                a('s_waitcnt lgkmcnt(0)')
            k1_mfma(a, st, mlp)

def k1_loader(a, mlp):
    k1_dma(a, 0, mlp)
    k1_dma(a, 1, mlp)
    npf = 0
    if PF:
        a('v_and_b32 v84, 31, v1')
        a('s_movk_i32 s30, 1280')
        a('v_mul_lo_u32 v84, v84, s30')
        a('v_lshl_add_u32 v84, v72, 7, v84')
        a('s_lshl_b32 s30, s24, 7')
        a('s_lshl_b32 s31, s3, 5')
        a('s_add_u32 s30, s30, s31')
        a('s_mul_i32 s30, s30, 1280')
        if mlp:
            a('v_lshrrev_b32 v90, 2, v1')
            a('s_movk_i32 s31, 3072')
            a('v_mul_lo_u32 v90, v90, s31')
            a('v_and_b32 v91, 3, v1')
            a('v_lshl_add_u32 v90, v91, 7, v90')
            a('s_lshl_b32 s53, s43, 6')
            a('s_add_u32 s53, s53, 128')
            a('s_mul_i32 s53, s53, 3072')
            a('s_add_u32 s53, s53, s27')
        else:
            a('s_movk_i32 s31, 1280')
            a('v_mul_lo_u32 v90, v2, s31')
            a('v_lshl_add_u32 v90, v20, 7, v90')
            a('v_add_u32 v90, 256, v90')
            a('s_and_b32 s31, s43, 1')
            a('s_cmp_eq_u32 s31, 0')
            a('s_cselect_b32 s48, s12, s16')
            a('s_cselect_b32 s49, s13, s17')
            a('s_mov_b32 s50, s14')
            a('s_mov_b32 s51, s15')
            a('s_lshr_b32 s53, s43, 1')
            a('s_lshl_b32 s53, s53, 5')
            a('s_lshl_b32 s31, s25, 7')
            a('s_add_u32 s53, s53, s31')
            a('s_lshl_b32 s31, s3, 3')
            a('s_add_u32 s53, s53, s31')
            a('s_mul_i32 s53, s53, 1280')
        for q in range(4):
            a(f'buffer_load_dword v{85 + q}, v84, s[8:11], s30 offen offset:{256 + 256 * q}')
            if q == 0:
                if mlp: a('buffer_load_dword v89, v90, s[12:15], s53 offen')
                else: a('buffer_load_dword v89, v90, s[48:51], s53 offen')
        npf = 5
    for s in range(NS):
        a(f's_waitcnt vmcnt({((12 + (npf if s < 2 else 0)) if s < NS - 1 else 0) if EXP != 2 else 0})')
        a('s_barrier')
        if s + 2 < NS:
            k1_dma(a, s + 2, mlp)
    a('s_endpgm')

def gen_k1(a):
    a.raw('.p2align 8')
    a.label('k1_kernel')
    a('s_cmp_ge_u32 s2, 256')
    a('s_cbranch_scc1 K1_END')
    a(f's_load_dwordx2 s[4:5], s[0:1], {KA["x"]}')
    a(f's_load_dwordx2 s[6:7], s[0:1], {KA["ws"]}')
    a('v_lshrrev_b32 v2, 6, v0')
    a('v_and_b32 v1, 63, v0')
    a('v_readfirstlane_b32 s52, v2')
    a('s_and_b32 s3, s52, 3')
    a('s_waitcnt lgkmcnt(0)')
    srd(a, 8, 4, 5, 2621440)
    srd(a, 20, 6, 7, WS_SIZE)
    stamp(a, 0)
    a('s_and_b32 s44, s2, 7')
    a('s_lshr_b32 s45, s2, 3')
    a('s_lshr_b32 s46, s44, 1')
    a('s_cmp_eq_u32 s46, 3')
    a('s_cselect_b32 s47, 16, 24')
    a('s_cmp_ge_u32 s45, s47')
    a('s_cbranch_scc1 K1_SIDE')
    a('s_and_b32 s43, s45, 7')
    a('s_and_b32 s24, s44, 1')
    a('s_lshl_b32 s24, s24, 3')
    a('s_add_u32 s24, s24, s43')
    a('s_mul_i32 s25, s46, 3')
    a('s_lshr_b32 s45, s45, 3')
    a('s_add_u32 s25, s25, s45')
    a('s_lshl_b32 s28, s3, 12')
    a('s_lshl_b32 s29, s3, 13')
    a('v_lshrrev_b32 v72, 5, v1')
    a('s_cmp_lt_u32 s52, 4')
    a('s_cbranch_scc1 K1_COMPUTE')

    a('v_lshrrev_b32 v2, 3, v1')
    a('v_lshrrev_b32 v3, 4, v1')
    a('v_and_b32 v20, 7, v1')
    a('v_xor_b32 v21, v20, v3')
    a('v_xor_b32 v22, 4, v21')
    a('v_lshlrev_b32 v21, 4, v21')
    a('v_lshlrev_b32 v22, 4, v22')
    a('s_cmp_ge_u32 s25, 5')
    a('s_cbranch_scc1 K1_LD_MLP')
    a(f's_load_dwordx4 s[32:35], s[0:1], {KA["bre"]}')
    a('v_and_b32 v74, 3, v2')
    a('v_lshl_add_u32 v74, v72, 6, v74')
    a('s_movk_i32 s30, 1280')
    a('v_mul_lo_u32 v74, v74, s30')
    a('v_add_u32 v4, v74, v21')
    a('v_add_u32 v5, v74, v22')
    a('v_mul_lo_u32 v74, v2, s30')
    a('v_add_u32 v6, v74, v21')
    a('v_add_u32 v7, v74, v22')
    a('s_lshl_b32 s26, s24, 7')
    a('s_lshl_b32 s30, s3, 4')
    a('s_add_u32 s26, s26, s30')
    a('s_mul_i32 s26, s26, 1280')
    a('s_lshl_b32 s42, s25, 7')
    a('s_lshl_b32 s30, s3, 5')
    a('s_add_u32 s42, s42, s30')
    a('s_mul_i32 s27, s42, 1280')
    a('s_waitcnt lgkmcnt(0)')
    srd(a, 12, 32, 33, 819200)
    srd(a, 16, 34, 35, 819200)
    k1_loader(a, False)
    a.label('K1_LD_MLP')
    a(f's_load_dwordx2 s[32:33], s[0:1], {KA["w1"]}')
    a('s_sub_u32 s25, s25, 5')
    a('s_movk_i32 s30, 1280')
    a('v_mul_lo_u32 v74, v2, s30')
    a('v_add_u32 v4, v74, v21')
    a('v_add_u32 v5, v74, v22')
    a('v_and_b32 v74, 31, v1')
    a('v_lshlrev_b32 v75, 2, v72')
    a('v_xor_b32 v74, v74, v75')
    a('v_xor_b32 v75, 8, v74')
    a('s_movk_i32 s30, 3072')
    a('v_mul_lo_u32 v76, v72, s30')
    a('v_lshl_add_u32 v6, v74, 4, v76')
    a('v_lshl_add_u32 v7, v75, 4, v76')
    a('s_lshl_b32 s26, s24, 7')
    a('s_lshl_b32 s30, s3, 5')
    a('s_add_u32 s26, s26, s30')
    a('s_mul_i32 s26, s26, 1280')
    a('s_mul_i32 s27, s3, 49152')
    a('s_lshl_b32 s30, s25, 9')
    a('s_add_u32 s27, s27, s30')
    a('s_waitcnt lgkmcnt(0)')
    srd(a, 12, 32, 33, 1966080)
    k1_loader(a, True)

    a.label('K1_COMPUTE')
    a('v_lshrrev_b32 v3, 4, v1')
    a('v_and_b32 v23, 31, v1')
    a('v_lshlrev_b32 v23, 7, v23')
    a('v_bfe_u32 v73, v1, 1, 3')
    for ks in range(4):
        a(f'v_add_u32 v74, {2 * ks}, v72')
        a('v_xor_b32 v74, v74, v73')
        a(f'v_lshl_add_u32 v{8 + ks}, v74, 4, v23')
    a('s_cmp_ge_u32 s25, 5')
    a('s_cbranch_scc1 K1_MLP')

    a(f's_load_dwordx4 s[36:39], s[0:1], {KA["lre"]}')
    a(f's_load_dwordx2 s[40:41], s[0:1], {KA["logdt"]}')
    a(f's_load_dwordx2 s[58:59], s[0:1], {KA["dbg"]}')
    a('s_lshl_b32 s42, s25, 7')
    a('s_lshl_b32 s30, s3, 5')
    a('s_add_u32 s42, s42, s30')
    a(f's_add_u32 s30, s29, {WB[0]}')
    for ks in range(4):
        a(f'v_add_u32 v{12 + ks}, s30, v{8 + ks}')
        a(f'v_add_u32 v{16 + ks}, 0x10000, v{12 + ks}')
    a('v_and_b32 v75, 31, v1')
    a('v_add_u32 v75, s42, v75')
    a('v_lshlrev_b32 v76, 1, v75')
    a('s_waitcnt lgkmcnt(0)')
    a('global_load_ushort v77, v76, s[36:37]')
    a('global_load_ushort v78, v76, s[38:39]')
    a('global_load_ushort v79, v76, s[40:41]')
    for i in range(128):
        a(f'v_mov_b32 v{ACC + i}, 0')
    a('s_waitcnt vmcnt(0)')
    lam_compute(a, 77, 78, 79, 80, 81, 82, 83)
    k1_mainloop(a, False)
    stamp(a, 2)
    a('s_nop 15')
    def rr(j): return acc(j >> 4, 0) + (j & 15)
    def ri(j): return acc(j >> 4, 1) + (j & 15)
    for j in range(1, 64):
        a(f'v_fma_f32 v{rr(j)}, -v81, v{ri(j-1)}, v{rr(j)}')
        a(f'v_fma_f32 v{ri(j)}, v81, v{rr(j-1)}, v{ri(j)}')
        a(f'v_fma_f32 v{rr(j)}, v80, v{rr(j-1)}, v{rr(j)}')
        a(f'v_fma_f32 v{ri(j)}, v80, v{ri(j-1)}, v{ri(j)}')
    a('s_movk_i32 s30, 1280')
    a('v_mul_lo_u32 v83, v72, s30')
    a('v_add_u32 v83, v83, v75')
    a('v_lshlrev_b32 v83, 2, v83')
    a(f'v_add_u32 v83, {EEND}, v83')
    a('s_mul_i32 s31, s24, 10240')
    a(f'buffer_store_dword v{rr(63)}, v83, s[20:23], s31 offen sc1')
    a(f'buffer_store_dword v{ri(63)}, v83, s[20:23], s31 offen offset:2560 sc1')
    a('v_add_f32 v48, -1.0, v80')
    a('v_mul_f32 v49, v77, v77')
    a('v_fma_f32 v49, v78, v78, v49')
    a('v_rcp_f32 v49, v49')
    a('v_mul_f32 v44, v48, v77')
    a('v_fma_f32 v44, v81, v78, v44')
    a('v_mul_f32 v45, v81, v77')
    a('v_fma_f32 v45, -v48, v78, v45')
    a('v_add_f32 v49, v49, v49')
    a('v_mul_f32 v44, v44, v49')
    a('v_mul_f32 v45, v45, v49')
    def csq(dr, di, sr, si):
        a(f'v_mul_f32 v48, v{si}, v{si}')
        a(f'v_mul_f32 v49, v{sr}, v{si}')
        a(f'v_fma_f32 v{dr}, v{sr}, v{sr}, -v48')
        a(f'v_add_f32 v{di}, v49, v49')
    csq(46, 47, 80, 81)
    for _ in range(5): csq(46, 47, 46, 47)
    a('s_waitcnt vmcnt(0)')
    a('s_barrier')
    a('s_lshl_b32 s53, 1, s24')
    a('s_sub_u32 s54, s53, 1')
    a('s_cmp_lg_u32 s3, 0')
    a('s_cbranch_scc1 K1_U_WAITED')
    a('s_lshl_b32 s30, s25, 2')
    a('v_mov_b32 v50, s30')
    a('v_mov_b32 v51, s53')
    a('s_mov_b64 s[56:57], exec')
    a('s_mov_b64 exec, 1')
    a('global_atomic_or v50, v51, s[58:59]')
    a('s_mov_b32 s55, 0')
    a.label('K1_U_POLL')
    a('global_load_dword v52, v50, s[58:59] sc1')
    a('s_waitcnt vmcnt(0)')
    a('v_readfirstlane_b32 s30, v52')
    a('s_and_b32 s30, s30, s54')
    a('s_cmp_eq_u32 s30, s54')
    a('s_cbranch_scc1 K1_U_POLLED')
    a('s_add_u32 s55, s55, 1')
    a('s_cmp_gt_u32 s55, 0x40000')
    a('s_cbranch_scc1 K1_U_POLLED')
    a('s_sleep 1')
    a('s_branch K1_U_POLL')
    a.label('K1_U_POLLED')
    a('s_mov_b64 exec, s[56:57]')
    a.label('K1_U_WAITED')
    a('s_barrier')
    def er(c): return (84 + 2 * c) if c < 22 else (24 + 2 * (c - 22))
    a('v_lshlrev_b32 v83, 2, v75')
    a(f'v_add_u32 v83, {EEND}, v83')
    a('s_lshl_b32 s53, s24, 1')
    for c in range(31):
        if c:
            a(f's_cmp_lt_u32 s53, {c}')
            a('s_cbranch_scc1 K1_U_ELD')
        a(f's_mov_b32 s30, {c * 5120}')
        a(f'buffer_load_dword v{er(c)}, v83, s[20:23], s30 offen sc1')
        a(f'buffer_load_dword v{er(c)+1}, v83, s[20:23], s30 offen offset:2560 sc1')
    a.label('K1_U_ELD')
    a('v_mov_b32 v50, 0')
    a('v_mov_b32 v51, 0')
    a('s_waitcnt vmcnt(0)')
    for c in range(31):
        a(f'v_fma_f32 v52, -v47, v51, v{er(c)}')
        a(f'v_fma_f32 v53, v47, v50, v{er(c)+1}')
        a('v_fma_f32 v52, v46, v50, v52')
        a('v_fma_f32 v53, v46, v51, v53')
        a(f's_cmp_eq_u32 s53, {c}')
        a('s_cbranch_scc1 K1_U_CARRY')
        a('v_mov_b32 v50, v52')
        a('v_mov_b32 v51, v53')
    a.label('K1_U_CARRY')
    a('v_cmp_eq_u32 vcc, 1, v72')
    a('s_nop 1')
    a('v_cndmask_b32 v50, v50, v52, vcc')
    a('v_cndmask_b32 v51, v51, v53, vcc')
    a('v_mul_f32 v52, v81, v51')
    a('v_mul_f32 v53, v81, v50')
    a('v_fma_f32 v54, v80, v50, -v52')
    a('v_fma_f32 v55, v80, v51, v53')
    a('v_and_b32 v56, 31, v1')
    a('s_lshl_b32 s30, s3, 5')
    a('v_add_u32 v56, s30, v56')
    a('v_mul_u32_u24 v56, 272, v56')
    a('v_lshl_add_u32 v56, v72, 7, v56')
    for j in range(64):
        a(f'v_add_f32 v{rr(j)}, v{rr(j)}, v54')
        a(f'v_add_f32 v{ri(j)}, v{ri(j)}, v55')
        if j < 63:
            a('v_mul_f32 v52, v81, v55')
            a('v_mul_f32 v53, v81, v54')
        a(f'v_mul_f32 v57, v45, v{ri(j)}')
        a(f'v_mul_f32 v58, v45, v{rr(j)}')
        if j < 63:
            a('v_fma_f32 v54, v80, v54, -v52')
            a('v_fma_f32 v55, v80, v55, v53')
        a(f'v_fma_f32 v{rr(j)}, v44, v{rr(j)}, -v57')
        a(f'v_fma_f32 v{ri(j)}, -v44, v{ri(j)}, -v58')
        if (j & 7) == 7:
            q = j >> 3
            for part, rf in ((0, rr), (1, ri)):
                o = 60 + part * 4
                for i in range(4):
                    a(f'v_cvt_pk_bf16_f32 v{o + i}, v{rf(8 * q + 2 * i)}, v{rf(8 * q + 2 * i + 1)}')
                a(f'ds_write_b128 v56, v[{o}:{o+3}] offset:{part * 34816 + q * 16}')
    a('v_lshrrev_b32 v57, 4, v1')
    a('v_bfe_u32 v58, v1, 2, 2')
    a('v_lshl_add_u32 v57, v57, 3, v58')
    a('v_add_u32 v57, s30, v57')
    a('v_mul_u32_u24 v57, 272, v57')
    a('v_and_b32 v58, 3, v1')
    a('v_lshl_add_u32 v57, v58, 3, v57')
    a('v_lshlrev_b32 v58, 4, v1')
    a('s_mul_i32 s31, s24, 80')
    a('s_lshl_b32 s30, s25, 2')
    a('s_add_u32 s31, s31, s30')
    a('s_add_u32 s31, s31, s3')
    a('s_lshl_b32 s31, s31, 12')
    a(f's_add_u32 s31, s31, {HF}')
    a('s_waitcnt lgkmcnt(0)')
    for part in range(2):
        for tb in range(8):
            r = 128 + (part * 8 + tb) * 4
            a(f'ds_read_b64_tr_b16 v[{r}:{r+1}], v57 offset:{part * 34816 + tb * 32}')
            a(f'ds_read_b64_tr_b16 v[{r+2}:{r+3}], v57 offset:{part * 34816 + 1088 + tb * 32}')
    for part in range(2):
        for tb in range(8):
            k = part * 8 + tb
            r = 128 + k * 4
            a(f's_waitcnt lgkmcnt({min(15, 2 * (15 - k))})')
            off = ((tb >> 2) * 40 + part * 20) * 4096 + (tb & 3) * 1024
            a(f's_add_u32 s30, s31, {off}')
            a(f'buffer_store_dwordx4 v[{r}:{r+3}], v58, s[20:23], s30 offen')
    stamp_flush(a, 0, 3)
    a('s_branch K1_END')

    a.label('K1_MLP')
    a(f's_load_dwordx4 s[32:35], s[0:1], {KA["w1"]}')
    a('s_sub_u32 s25, s25, 5')
    a('v_bfe_u32 v74, v1, 2, 2')
    a('v_lshl_add_u32 v75, v72, 3, v74')
    a('v_lshlrev_b32 v75, 9, v75')
    a('v_bfe_u32 v76, v1, 1, 1')
    a('v_lshl_add_u32 v75, v76, 3, v75')
    a('v_and_b32 v76, 1, v3')
    a('v_and_b32 v77, 1, v1')
    a('v_lshl_add_u32 v76, v76, 1, v77')
    a('s_lshl_b32 s30, s3, 3')
    a('v_add_u32 v76, s30, v76')
    a('v_lshlrev_b32 v74, 2, v74')
    for jt in range(2):
        a(f'v_add_u32 v77, {4 * jt}, v76')
        a('v_xor_b32 v77, v77, v74')
        a(f'v_lshl_add_u32 v{12 + jt}, v77, 4, v75')
        a(f'v_add_u32 v{12 + jt}, {WB[0]}, v{12 + jt}')
        a(f'v_add_u32 v{16 + jt}, 0x10000, v{12 + jt}')
    a('s_lshl_b32 s42, s25, 8')
    a('s_lshl_b32 s30, s3, 6')
    a('s_add_u32 s42, s42, s30')
    a('v_lshlrev_b32 v74, 4, v72')
    a('s_lshl_b32 s30, s42, 1')
    a('v_add_u32 v74, s30, v74')
    a('s_waitcnt lgkmcnt(0)')
    for jt in range(2):
        for ap in range(2):
            r = 96 + (jt * 2 + ap) * 4
            a(f'global_load_dwordx4 v[{r}:{r+3}], v74, s[34:35] offset:{(32 * jt + 16 * ap) * 2}')
    mish_consts(a)
    T = list(range(56, 64))
    a('v_and_b32 v24, 1, v0')
    a('v_lshlrev_b32 v24, 31, v24')
    a(f'v_add_u32 v25, {LUT_LO2}, v0')
    a('v_lshrrev_b32 v25, 1, v25')
    a('v_lshl_or_b32 v25, v25, 16, v24')
    a('v_lshlrev_b32 v26, 2, v0')
    for i in range(0, 14, 2):
        a(f'v_add_u32 v27, {(128 * i) << 16}, v25')
        a(f'v_add_u32 v28, {(128 * (i + 1)) << 16}, v25')
        mish_pair(a, 27, 28, None, T, want_th=True)
        a(f'ds_write_b32 v26, v{T[0]} offset:{LUTB + 1024 * i}')
        a(f'ds_write_b32 v26, v{T[1]} offset:{LUTB + 1024 * (i + 1)}')
    for i in range(128):
        a(f'v_mov_b32 v{ACC + i}, 0')
    a('s_waitcnt lgkmcnt(0)')
    k1_mainloop(a, True)
    stamp(a, 2)
    a('s_waitcnt vmcnt(0)')
    for jt in range(2):
        for ap in range(2):
            for i in range(4):
                src = 96 + (jt * 2 + ap) * 4 + i
                d = 24 + jt * 16 + ap * 8 + i * 2
                a(f'v_lshlrev_b32 v{d}, 16, v{src}')
                a(f'v_and_b32 v{d+1}, 0xffff0000, v{src}')
    a('v_bfe_u32 v74, v1, 4, 1')
    a('v_lshlrev_b32 v74, 10, v74')
    a('v_and_b32 v75, 15, v1')
    a('v_lshl_add_u32 v74, v75, 4, v74')
    a('v_lshl_add_u32 v74, v72, 8, v74')
    a('s_mul_i32 s31, s24, 393216')
    a('s_lshl_b32 s30, s42, 7')
    a('s_add_u32 s31, s31, s30')
    if ACTF: a(f's_add_u32 s31, s31, {ACTF}')
    a(f's_mov_b32 s65, {LUT_LO2 | (LUT_LO2 << 16)}')
    a('v_mov_b32 v75, 0')
    groups = [(mt, jt, ap) for mt in range(4) for jt in range(2) for ap in range(2)]
    def stage_a(g, k):
        mt, jt, ap = g
        for i in range(4):
            c0 = acc(mt, jt) + ap * 8 + i * 2
            b0 = 24 + jt * 16 + ap * 8 + i * 2
            t = 112 + 2 * i
            a(f'v_cvt_pk_bf16_f32 v{t}, v{c0}, v{c0+1}')
            a(f'v_lshlrev_b32 v{c0}, 16, v{t}')
            a(f'v_and_b32 v{c0+1}, 0xffff0000, v{t}')
            a(f'v_add_f32 v{c0}, v{c0}, v{b0}')
            a(f'v_add_f32 v{c0+1}, v{c0+1}, v{b0+1}')
            a(f'v_cvt_pk_bf16_f32 v{t}, v{c0}, v{c0+1}')
            a(f'v_lshlrev_b32 v{c0}, 16, v{t}')
            a(f'v_and_b32 v{c0+1}, 0xffff0000, v{t}')
            a(f'v_pk_lshlrev_b16 v{t+1}, 1, v{t} op_sel_hi:[0,1]')
            a(f'v_pk_lshrrev_b16 v{t}, 15, v{t} op_sel_hi:[0,1]')
            a(f'v_or_b32 v{t}, v{t}, v{t+1}')
            a(f'v_pk_sub_u16 v{t}, v{t}, s65 clamp')
            a(f'v_pk_max_u16 v75, v75, v{t}')
            a(f'v_lshlrev_b32_sdwa v{t+1}, 2, v{t} dst_sel:DWORD dst_unused:UNUSED_PAD src0_sel:DWORD src1_sel:WORD_1')
            a(f'v_lshlrev_b32_sdwa v{t}, 2, v{t} dst_sel:DWORD dst_unused:UNUSED_PAD src0_sel:DWORD src1_sel:WORD_0')
            a(f'ds_read_b32 v{96 + 8 * k + 2 * i}, v{t} offset:{LUTB}')
            a(f'ds_read_b32 v{97 + 8 * k + 2 * i}, v{t+1} offset:{LUTB}')
    def store_g(g, outr):
        mt, jt, ap = g
        off = (mt >> 1) * 196608 + jt * 4096 + 2 * (mt & 1) * 1024 + ap * 512
        a(f's_add_u32 s30, s31, {off}')
        a(f'buffer_store_dwordx4 v[{outr}:{outr+3}], v74, s[20:23], s30 offen')
    def stage_b(g, k):
        mt, jt, ap = g
        outr = 64 + 4 * k
        for i in range(4):
            c0 = acc(mt, jt) + ap * 8 + i * 2
            th = 96 + 8 * k + 2 * i
            a(f'v_mul_f32 v{th}, v{th}, v{c0}')
            a(f'v_mul_f32 v{th+1}, v{th+1}, v{c0+1}')
            a(f'v_cvt_pk_bf16_f32 v{outr + i}, v{th}, v{th+1}')
        store_g(g, outr)
    stage_a(groups[0], 0)
    for gi in range(16):
        k = gi & 1
        if gi + 1 < 16:
            stage_a(groups[gi + 1], k ^ 1)
            a('s_waitcnt lgkmcnt(8)')
        else:
            a('s_waitcnt lgkmcnt(0)')
        stage_b(groups[gi], k)
    a(f's_mov_b32 s30, {(LUT_N - 1) | ((LUT_N - 1) << 16)}')
    a('v_pk_sub_u16 v76, v75, s30 clamp')
    a('v_cmp_ne_u32 vcc, 0, v76')
    a('s_cbranch_vccz K1_MLP_DONE')
    a('s_waitcnt vmcnt(0)')
    for gi, g in enumerate(groups):
        mt, jt, ap = g
        outr = 64 + 4 * (gi & 1)
        for i in range(4):
            c0 = acc(mt, jt) + ap * 8 + i * 2
            mish_pair(a, c0, c0 + 1, outr + i, T)
        store_g(g, outr)
    a.label('K1_MLP_DONE')
    stamp_flush(a, 0, 3)
    a('s_branch K1_END')

    a.label('K1_SIDE')
    a('s_sub_u32 s24, s45, s47')
    a('s_lshl_b32 s30, s44, 3')
    a('s_sub_u32 s31, s44, 6')
    a('s_lshl_b32 s31, s31, 4')
    a('s_add_u32 s31, s31, 48')
    a('s_cmp_eq_u32 s46, 3')
    a('s_cselect_b32 s30, s31, s30')
    a('s_add_u32 s24, s24, s30')
    a('s_lshl_b32 s24, s24, 3')
    a('s_add_u32 s24, s24, s52')
    a(f's_load_dwordx2 s[32:33], s[0:1], {KA["gw"]}')
    a(f's_load_dwordx2 s[34:35], s[0:1], {KA["w2"]}')
    a(f's_load_dwordx4 s[36:39], s[0:1], {KA["cre"]}')
    a('v_lshlrev_b32 v2, 2, v1')
    a('v_and_b32 v3, 15, v1')
    a('v_lshrrev_b32 v6, 4, v1')
    a('s_movk_i32 s30, 10240')
    a('v_mul_lo_u32 v4, v6, s30')
    a('v_lshl_add_u32 v4, v3, 1, v4')
    a('v_lshlrev_b32 v5, 4, v1')
    a('s_movk_i32 s30, 1280')
    a('v_mul_lo_u32 v7, v3, s30')
    a('v_lshl_add_u32 v7, v6, 4, v7')
    a('s_waitcnt lgkmcnt(0)')
    srd(a, 12, 34, 35, 1966080)
    srd(a, 16, 36, 37, 819200)
    srd(a, 48, 38, 39, 819200)
    for j in range(5):
        a(f'global_load_dword v{10 + j}, v2, s[32:33] offset:{256 * j}')
    for i in range(4):
        a(f's_add_u32 s30, s24, {640 * i}')
        a('s_mul_i32 s30, s30, 1280')
        for j in range(5):
            a(f'buffer_load_dword v{16 + 5 * i + j}, v2, s[8:11], s30 offen offset:{256 * j}')
    for i in range(3):
        a(f's_add_u32 s25, s24, {640 * i}')
        a('s_mov_b32 s30, 0x01111112')
        a('s_mul_hi_u32 s40, s25, s30')
        a('s_mul_i32 s41, s40, 240')
        a('s_sub_u32 s41, s25, s41')
        a('s_mov_b32 s30, 0x33333334')
        a('s_mul_hi_u32 s42, s41, s30')
        a('s_mul_i32 s43, s42, 5')
        a('s_sub_u32 s43, s41, s43')
        a('s_mul_i32 s40, s40, 160')
        a('s_lshl_b32 s43, s43, 5')
        a('s_mul_i32 s42, s42, 40960')
        a('s_add_u32 s30, s40, s43')
        a('s_add_u32 s30, s30, s42')
        for k in range(8):
            if k: a('s_add_u32 s30, s30, 1280')
            a(f'buffer_load_ushort v{40 + 8 * i + k}, v4, s[12:15], s30 offen')
    for i in range(3):
        lab = a.newlabel('K1_CF')
        a(f's_add_u32 s25, s24, {640 * i}')
        a('s_mov_b32 s30, 0x0147ae15')
        a('s_mul_hi_u32 s40, s25, s30')
        a('s_mul_i32 s41, s40, 200')
        a('s_sub_u32 s41, s25, s41')
        a('s_mov_b32 s30, 0x33333334')
        a('s_mul_hi_u32 s42, s41, s30')
        a('s_mul_i32 s43, s42, 5')
        a('s_sub_u32 s43, s41, s43')
        a('s_mul_i32 s40, s40, 102400')
        a('s_mul_i32 s43, s43, 20480')
        a('s_add_u32 s30, s40, s43')
        a('s_cmp_ge_u32 s42, 20')
        a(f's_cbranch_scc1 {lab}_im')
        a('s_lshl_b32 s42, s42, 6')
        a('s_add_u32 s30, s30, s42')
        a(f'buffer_load_dwordx4 v[{64 + 4 * i}:{67 + 4 * i}], v7, s[16:19], s30 offen')
        a(f's_branch {lab}_done')
        a.label(f'{lab}_im')
        a('s_sub_u32 s42, s42, 20')
        a('s_lshl_b32 s42, s42, 6')
        a('s_add_u32 s30, s30, s42')
        a(f'buffer_load_dwordx4 v[{64 + 4 * i}:{67 + 4 * i}], v7, s[48:51], s30 offen')
        a.label(f'{lab}_done')
    a('s_waitcnt vmcnt(0)')
    for i in range(3):
        for k in range(4):
            a(f'v_lshl_or_b32 v{80 + 4 * i + k}, v{41 + 8 * i + 2 * k}, 16, v{40 + 8 * i + 2 * k}')
        a(f's_add_u32 s30, s24, {640 * i}')
        a('s_lshl_b32 s30, s30, 10')
        a(f's_add_u32 s30, s30, {W2F}')
        a(f'buffer_store_dwordx4 v[{80 + 4 * i}:{83 + 4 * i}], v5, s[20:23], s30 offen')
    for i in range(3):
        lab = a.newlabel('K1_CFS')
        a(f's_add_u32 s30, s24, {640 * i}')
        if i == 2:
            a('s_cmp_ge_u32 s30, 1600')
            a(f's_cbranch_scc1 {lab}')
        a('s_lshl_b32 s30, s30, 10')
        a(f's_add_u32 s30, s30, {CF}')
        a(f'buffer_store_dwordx4 v[{64 + 4 * i}:{67 + 4 * i}], v5, s[20:23], s30 offen')
        a.label(lab)
    for j in range(5):
        a(f'v_lshlrev_b32 v{100 + 2 * j}, 16, v{10 + j}')
        a(f'v_and_b32 v{101 + 2 * j}, 0xffff0000, v{10 + j}')
    a(f's_mov_b32 s60, {f2h(-1.4426950408889634)}')
    for i in range(4):
        lab = a.newlabel('K1_G')
        a(f's_add_u32 s25, s24, {640 * i}')
        if i == 3:
            a('s_cmp_ge_u32 s25, 2048')
            a(f's_cbranch_scc1 {lab}')
        a('v_mov_b32 v120, 0')
        for j in range(5):
            a(f'v_lshlrev_b32 v110, 16, v{16 + 5 * i + j}')
            a(f'v_and_b32 v111, 0xffff0000, v{16 + 5 * i + j}')
            a(f'v_mul_f32 v110, v110, v{100 + 2 * j}')
            a(f'v_mul_f32 v111, v111, v{101 + 2 * j}')
            round_bf16_pair(a, 110, 111, 112)
            a('v_add_f32 v120, v120, v110')
            a('v_add_f32 v120, v120, v111')
        for sh in (1, 2, 4, 8):
            a('s_nop 1')
            a(f'v_add_f32_dpp v120, v120, v120 row_shr:{sh} row_mask:0xf bank_mask:0xf')
        a('s_nop 1')
        a('v_readlane_b32 s40, v120, 15')
        a('v_readlane_b32 s41, v120, 31')
        a('v_readlane_b32 s42, v120, 47')
        a('v_readlane_b32 s43, v120, 63')
        a('s_nop 1')
        a('v_mov_b32 v121, s40')
        a('v_add_f32 v121, s41, v121')
        a('v_add_f32 v121, s42, v121')
        a('v_add_f32 v121, s43, v121')
        a('v_cvt_pk_bf16_f32 v121, v121, v121')
        a('v_lshlrev_b32 v121, 16, v121')
        a('v_mul_f32 v122, s60, v121')
        a('v_exp_f32 v122, v122')
        a('s_nop 0')
        a('v_add_f32 v122, 1.0, v122')
        a('v_rcp_f32 v122, v122')
        a('s_nop 0')
        a('v_cvt_pk_bf16_f32 v122, v122, v122')
        a('v_lshlrev_b32 v122, 16, v122')
        a('v_sub_f32 v123, 1.0, v122')
        a('v_cvt_pk_bf16_f32 v123, v123, v123')
        a('v_lshlrev_b32 v123, 16, v123')
        a('s_lshl_b32 s30, s25, 3')
        a(f's_add_u32 s30, s30, {GATE}')
        a('v_mov_b32 v124, 0')
        a('s_mov_b64 s[40:41], exec')
        a('s_mov_b64 exec, 1')
        a('buffer_store_dwordx2 v[122:123], v124, s[20:23], s30 offen')
        a('s_mov_b64 exec, s[40:41]')
        a.label(lab)
    stamp(a, 1)
    stamp(a, 2)
    a('s_mov_b32 s3, s52')
    stamp_flush(a, 0, 3)
    a.label('K1_END')
    a('s_endpgm')

def qacc(fa, fb): return (fa * 5 + fb) * 4
QD = 5
def qfr(st, i): return 16 + st * 36 + i * 4

def q_loads(a, st):
    for fa in range(4):
        r = qfr(st, fa)
        a(f'buffer_load_dwordx4 v[{r}:{r+3}], v2, s[20:23], s26 offen offset:{fa * 1024}')
    for fb in range(5):
        r = qfr(st, 4 + fb)
        if fb < 4:
            a(f'buffer_load_dwordx4 v[{r}:{r+3}], v2, s[20:23], s27 offen offset:{fb * 1024}')
        else:
            a(f'buffer_load_dwordx4 v[{r}:{r+3}], v3, s[20:23], s27 offen')
    a('s_add_u32 s26, s26, 4096')
    a('s_add_u32 s27, s27, 5120')

def q_loop(a, KS, nKS, abase, bbase):
    a(f's_mul_i32 s26, s24, {nKS}')
    a(f's_mul_i32 s30, s31, {KS}')
    a('s_add_u32 s26, s26, s30')
    a('s_lshl_b32 s26, s26, 12')
    a(f's_add_u32 s26, s26, {abase}')
    a(f's_mul_i32 s27, s25, {nKS}')
    a('s_add_u32 s27, s27, s30')
    a('s_mul_i32 s27, s27, 5120')
    a(f's_add_u32 s27, s27, {bbase}')
    for s in range(min(QD, KS)):
        q_loads(a, s)
    for i in range(80):
        a(f'v_accvgpr_write_b32 a{i}, 0')
    for s in range(KS):
        st = s % QD
        inflight = min(QD, KS - s)
        a(f's_waitcnt vmcnt({9 * (inflight - 1)})')
        if s == 0: stamp(a, 1)
        for fa in range(4):
            for fb in range(5):
                c = qacc(fa, fb); A = qfr(st, fa); B = qfr(st, 4 + fb)
                a(f'v_mfma_f32_16x16x32_bf16 a[{c}:{c+3}], v[{A}:{A+3}], v[{B}:{B+3}], a[{c}:{c+3}]')
        if s + QD < KS:
            q_loads(a, st)

def common_prologue(a, endlabel, nwg):
    a(f's_cmp_ge_u32 s2, {nwg}')
    a(f's_cbranch_scc1 {endlabel}')
    a(f's_load_dwordx2 s[6:7], s[0:1], {KA["ws"]}')
    a('v_lshrrev_b32 v2, 6, v0')
    a('v_and_b32 v1, 63, v0')
    a('v_readfirstlane_b32 s3, v2')
    a('s_waitcnt lgkmcnt(0)')
    srd(a, 20, 6, 7, WS_SIZE)
    stamp(a, 0)

def gen_k2(a):
    a.raw('.p2align 8')
    a.label('k2_kernel')
    common_prologue(a, 'K2_END', 160)
    a.label('K2_FIX')
    a('s_mov_b32 s24, s2')
    a('s_mov_b32 s30, 0x33333334')
    a('s_mul_hi_u32 s25, s24, s30')
    a('s_mul_i32 s30, s25, 5')
    a('s_sub_u32 s24, s24, s30')
    a(f's_load_dwordx4 s[36:39], s[0:1], {KA["lre"]}')
    a(f's_load_dwordx2 s[40:41], s[0:1], {KA["logdt"]}')
    a('v_lshrrev_b32 v2, 4, v0')
    a('v_and_b32 v3, 15, v0')
    a('s_lshl_b32 s30, s25, 4')
    a('v_add_u32 v4, s30, v2')
    a('s_movk_i32 s30, 1280')
    a('v_mul_lo_u32 v4, v4, s30')
    a('s_lshl_b32 s31, s24, 4')
    a('v_add_u32 v4, v3, v4')
    a('v_add_u32 v4, s31, v4')
    a('v_lshlrev_b32 v4, 4, v4')
    a(f'v_add_u32 v4, {SLOC}, v4')
    a('s_lshl_b32 s31, s24, 7')
    def sloc_loads():
        for part in range(2):
            for ch in range(8):
                off = part * 10240 + ch * 1280
                a(f's_movk_i32 s30, {off}')
                a(f'buffer_load_dwordx4 v[{128 + part * 32 + ch * 4}:{131 + part * 32 + ch * 4}], v4, s[20:23], s30 offen')
    a('s_cmp_lt_u32 s3, 2')
    a('s_cbranch_scc1 K2_FIX_P1')
    sloc_loads()
    a('s_branch K2_FIX_P2')
    a.label('K2_FIX_P1')
    a('v_add_u32 v5, s31, v0')
    a('v_lshlrev_b32 v6, 2, v5')
    a(f'v_add_u32 v6, {EEND}, v6')
    for c in range(31):
        a(f's_mov_b32 s30, {c * 5120}')
        a(f'buffer_load_dword v{64 + 2 * c}, v6, s[20:23], s30 offen')
        a(f'buffer_load_dword v{65 + 2 * c}, v6, s[20:23], s30 offen offset:2560')
    a('v_lshlrev_b32 v6, 1, v5')
    a('s_waitcnt lgkmcnt(0)')
    a('global_load_ushort v10, v6, s[36:37]')
    a('global_load_ushort v11, v6, s[38:39]')
    a('global_load_ushort v12, v6, s[40:41]')
    sloc_loads()
    a('s_waitcnt vmcnt(16)')
    lam_compute(a, 10, 11, 12, 13, 14, 15, 16)
    a('v_add_f32 v15, -1.0, v13')
    a('v_mul_f32 v16, v10, v10')
    a('v_fma_f32 v16, v11, v11, v16')
    a('v_rcp_f32 v16, v16')
    a('v_mul_f32 v17, v15, v10')
    a('v_fma_f32 v17, v14, v11, v17')
    a('v_mul_f32 v18, v14, v10')
    a('v_fma_f32 v18, -v15, v11, v18')
    a('v_add_f32 v16, v16, v16')
    a('v_mul_f32 v17, v17, v16')
    a('v_mul_f32 v18, v18, v16')
    def csq(dr, di, sr, si):
        a(f'v_mul_f32 v24, v{si}, v{si}')
        a(f'v_mul_f32 v25, v{sr}, v{si}')
        a(f'v_fma_f32 v{dr}, v{sr}, v{sr}, -v24')
        a(f'v_add_f32 v{di}, v25, v25')
    csq(19, 20, 13, 14)
    csq(21, 22, 19, 20)
    csq(19, 20, 21, 22)
    csq(19, 20, 19, 20)
    csq(19, 20, 19, 20)
    csq(19, 20, 19, 20)
    a('v_mov_b32 v26, 0')
    a('v_mov_b32 v27, 0')
    for c in range(31):
        a(f's_cmp_le_u32 s25, {c}')
        a('s_cbranch_scc1 K2_FIX_CARRY_DONE')
        a(f'v_fma_f32 v{64 + 2 * c}, -v20, v27, v{64 + 2 * c}')
        a(f'v_fma_f32 v{65 + 2 * c}, v20, v26, v{65 + 2 * c}')
        a(f'v_fma_f32 v28, v19, v26, v{64 + 2 * c}')
        a(f'v_fma_f32 v27, v19, v27, v{65 + 2 * c}')
        a('v_mov_b32 v26, v28')
    a.label('K2_FIX_CARRY_DONE')
    a('v_mul_f32 v28, v14, v27')
    a('v_mul_f32 v29, v14, v26')
    a('v_fma_f32 v30, v13, v26, -v28')
    a('v_fma_f32 v31, v13, v27, v29')
    a('v_lshlrev_b32 v6, 3, v0')
    for q in range(16):
        a(f'ds_write_b64 v6, v[30:31] offset:{q * 1024}')
        if q < 15:
            a('v_mul_f32 v28, v22, v31')
            a('v_mul_f32 v29, v22, v30')
            a('v_fma_f32 v32, v21, v30, -v28')
            a('v_fma_f32 v31, v21, v31, v29')
            a('v_mov_b32 v30, v32')
    a('v_mov_b32 v32, v13')
    a('v_mov_b32 v33, v14')
    a('v_mov_b32 v34, v17')
    a('v_mov_b32 v35, v18')
    a('v_lshlrev_b32 v6, 4, v0')
    a('ds_write_b128 v6, v[32:35] offset:16384')
    a.label('K2_FIX_P2')
    a('s_waitcnt lgkmcnt(0)')
    stamp(a, 1)
    a('s_barrier')
    a('v_lshlrev_b32 v5, 10, v2')
    a('v_lshl_add_u32 v5, v3, 6, v5')
    a('v_lshlrev_b32 v6, 7, v3')
    for i in range(4):
        a(f'ds_read_b128 v[{16 + 4 * i}:{19 + 4 * i}], v5 offset:{16 * i}')
    for ch in range(8):
        a(f'ds_read_b128 v[{32 + 4 * ch}:{35 + 4 * ch}], v6 offset:{16384 + 16 * ch}')
    a('s_mul_i32 s30, s25, 40')
    a('s_lshl_b32 s31, s24, 2')
    a('s_add_u32 s30, s30, s31')
    a('v_lshrrev_b32 v7, 2, v3')
    a('v_add_u32 v7, s30, v7')
    a('v_lshrrev_b32 v8, 2, v2')
    a('v_lshl_add_u32 v7, v7, 2, v8')
    a('v_lshlrev_b32 v7, 10, v7')
    a('v_and_b32 v8, 3, v2')
    a('v_lshl_add_u32 v7, v8, 6, v7')
    a('v_and_b32 v8, 3, v3')
    a('v_lshl_add_u32 v7, v8, 8, v7')
    a(f'v_add_u32 v7, {HF}, v7')
    a('s_mov_b32 s30, 81920')
    a('s_waitcnt vmcnt(0) lgkmcnt(0)')
    stamp(a, 2)
    for ch in range(8):
        gr = 16 + 2 * ch; gi = gr + 1
        lr = 32 + 4 * ch; li = lr + 1; cr = lr + 2; ci = lr + 3
        for j in range(4):
            sr = 128 + ch * 4 + j; si = 160 + ch * 4 + j
            a(f'v_add_f32 v{sr}, v{sr}, v{gr}')
            a(f'v_add_f32 v{si}, v{si}, v{gi}')
            a(f'v_mul_f32 v8, v{ci}, v{si}')
            a(f'v_mul_f32 v9, v{ci}, v{sr}')
            a(f'v_fma_f32 v{64 + j * 8 + ch}, v{cr}, v{sr}, -v8')
            a(f'v_fma_f32 v{96 + j * 8 + ch}, -v{cr}, v{si}, -v9')
            if j < 3:
                a(f'v_mul_f32 v8, v{li}, v{gi}')
                a(f'v_mul_f32 v9, v{li}, v{gr}')
                a(f'v_fma_f32 v10, v{lr}, v{gr}, -v8')
                a(f'v_fma_f32 v{gi}, v{lr}, v{gi}, v9')
                a(f'v_mov_b32 v{gr}, v10')
    for j in range(4):
        for part in range(2):
            b0 = (64 if part == 0 else 96) + j * 8
            o = 128 + (j * 2 + part) * 4
            for i in range(4):
                a(f'v_cvt_pk_bf16_f32 v{o + i}, v{b0 + 2 * i}, v{b0 + 2 * i + 1}')
            so = '0' if part == 0 else 's30'
            a(f'buffer_store_dwordx4 v[{o}:{o+3}], v7, s[20:23], {so} offen offset:{j * 16}')
    stamp_flush(a, 1, 3)
    a.label('K2_END')
    a('s_endpgm')

def gen_k3(a):
    a.raw('.p2align 8')
    a.label('k3_kernel')
    a('s_cmp_ge_u32 s2, 256')
    a('s_cbranch_scc1 K3_END')
    a(f's_load_dwordx2 s[6:7], s[0:1], {KA["ws"]}')
    a(f's_load_dwordx2 s[4:5], s[0:1], {KA["x"]}')
    a(f's_load_dwordx2 s[32:33], s[0:1], {KA["dskip"]}')
    a(f's_load_dwordx2 s[34:35], s[0:1], {KA["out"]}')
    a('v_lshrrev_b32 v2, 6, v0')
    a('v_and_b32 v1, 63, v0')
    a('v_readfirstlane_b32 s3, v2')
    a('s_and_b32 s24, s2, 31')
    a('s_lshr_b32 s25, s2, 5')
    a('v_lshlrev_b32 v2, 4, v1')
    a('v_add_u32 v3, 4096, v2')
    a('s_lshl_b32 s30, s24, 6')
    a('s_lshl_b32 s31, s3, 4')
    a('s_add_u32 s30, s30, s31')
    a('v_lshrrev_b32 v5, 4, v1')
    a('v_lshlrev_b32 v5, 2, v5')
    a('v_add_u32 v5, s30, v5')
    a('v_lshlrev_b32 v6, 3, v5')
    a(f'v_add_u32 v6, {GATE}, v6')
    a('s_mul_i32 s30, s25, 80')
    a('v_and_b32 v8, 15, v1')
    a('v_add_u32 v8, s30, v8')
    a('v_lshlrev_b32 v9, 1, v8')
    a('s_movk_i32 s30, 1280')
    a('v_mul_lo_u32 v10, v5, s30')
    a('v_add_u32 v10, v10, v9')
    a('v_lshlrev_b32 v11, 1, v10')
    a('s_waitcnt lgkmcnt(0)')
    srd(a, 20, 6, 7, WS_SIZE)
    srd(a, 8, 4, 5, 2621440)
    srd(a, 12, 34, 35, 5242880)
    stamp(a, 0)
    G0 = 196
    a(f'buffer_load_dwordx4 v[{G0}:{G0+3}], v6, s[20:23], 0 offen')
    a(f'buffer_load_dwordx4 v[{G0+4}:{G0+7}], v6, s[20:23], 0 offen offset:16')
    for fb in range(5):
        a(f'global_load_ushort v{204 + fb}, v9, s[32:33] offset:{32 * fb}')
    for r in range(4):
        a(f's_mov_b32 s30, {r * 1280}')
        for fb in range(5):
            a(f'buffer_load_ushort v{210 + fb * 4 + r}, v10, s[8:11], s30 offen offset:{32 * fb}')
    a('s_and_b32 s31, s3, 1')
    a('s_cmp_ge_u32 s3, 2')
    a('s_cbranch_scc1 K3_H')
    q_loop(a, 24, 48, ACTF, W2F)
    a('s_branch K3_RED')
    a.label('K3_H')
    q_loop(a, 20, 40, HF, CF)
    a.label('K3_RED')
    stamp(a, 2)
    a('s_nop 7')
    a('s_mul_i32 s30, s3, 20480')
    a('v_add_u32 v4, s30, v2')
    for t in range(20):
        a(f'ds_write_b128 v4, a[{t * 4}:{t * 4 + 3}] offset:{t * 1024}')
    for fb in range(5):
        a(f'v_lshlrev_b32 v{204 + fb}, 16, v{204 + fb}')
        for r in range(4):
            x = 210 + fb * 4 + r
            a(f'v_lshlrev_b32 v{x}, 16, v{x}')
            a(f'v_mul_f32 v{x}, v{x}, v{204 + fb}')
        round_bf16_pair(a, 210 + fb * 4, 211 + fb * 4, 12)
        round_bf16_pair(a, 212 + fb * 4, 213 + fb * 4, 12)
    a('s_waitcnt lgkmcnt(0)')
    a('s_barrier')
    a('s_mul_i32 s30, s3, 5120')
    a('v_add_u32 v4, s30, v2')
    a('v_add_u32 v7, 40960, v4')
    for u in range(4):
        for fb in range(5):
            r = 16 + (u * 5 + fb) * 4
            a(f'ds_read_b128 v[{r}:{r+3}], v{4 if u < 2 else 7} offset:{(u & 1) * 20480 + fb * 1024}')
    a('s_waitcnt lgkmcnt(0)')
    for fb in range(5):
        for r in range(4):
            d = 16 + fb * 4 + r
            a(f'v_add_f32 v{d}, v{d}, v{d + 20}')
            a(f'v_add_f32 v{d + 40}, v{d + 40}, v{d + 60}')
        d = 16 + fb * 4
        round_bf16_pair(a, d, d + 1, 12)
        round_bf16_pair(a, d + 2, d + 3, 12)
        for r in range(4):
            a(f'v_mul_f32 v{d + r}, v{d + r}, v{G0 + 1 + 2 * r}')
        round_bf16_pair(a, d, d + 1, 12)
        round_bf16_pair(a, d + 2, d + 3, 12)
        for r in range(4):
            y = d + 40 + r; x = 210 + fb * 4 + r
            a(f'v_add_f32 v{y}, v{y}, v{x}')
            a(f'v_mul_f32 v{y}, v{G0 + 2 * r}, v{y}')
            a(f'v_add_f32 v{y}, v{y}, v{d + r}')
    for r in range(4):
        a(f's_mov_b32 s30, {r * 2560}')
        for fb in range(5):
            a(f'buffer_store_dword v{56 + fb * 4 + r}, v11, s[12:15], s30 offen offset:{64 * fb}')
    stamp_flush(a, 2, 3)
    a.label('K3_END')
    a('s_endpgm')

def desc(name, vgpr=256):
    return f'''.p2align 6
.amdhsa_kernel {name}
  .amdhsa_next_free_vgpr {vgpr}
  .amdhsa_next_free_sgpr 102
  .amdhsa_accum_offset 256
  .amdhsa_group_segment_fixed_size 0
  .amdhsa_kernarg_size 136
  .amdhsa_user_sgpr_count 2
  .amdhsa_user_sgpr_kernarg_segment_ptr 1
  .amdhsa_system_sgpr_workgroup_id_x 1
  .amdhsa_float_denorm_mode_32 3
.end_amdhsa_kernel
'''

def main(out):
    hdr = open(f'cdna_kernels/{NAME}.s.ref').read().split('; Override launch')[0]
    a.raw(hdr.rstrip('\n'))
    a.raw(f'; @launch kernel=k1_kernel grid=(256,1,1) block=(512,1,1) lds={K1_LDS}')
    a.raw('; @launch kernel=k3_kernel grid=(256,1,1) block=(256,1,1) lds=81920')
    a.raw('.amdgcn_target "amdgcn-amd-amdhsa--gfx950"')
    a.raw('.text')
    for k in ('k1_kernel', 'k3_kernel'):
        a.raw(f'.globl {k}')
        a.raw(f'.type {k},@function')
    gen_k1(a); gen_k3(a)
    a.raw('.section .rodata,"a"')
    a.raw(desc('k1_kernel')); a.raw(desc('k3_kernel', 336))
    t = a.text()
    open(out, 'w').write(t)
    w = lint(t)
    for x in w[:40]: print('HAZARD', x)
    print('lines', len(t.split('\n')), 'bytes', len(t), 'hazards', len(w))

if __name__ == '__main__':
    main(sys.argv[1] if len(sys.argv) > 1 else f'cdna_kernels/{NAME}.s')
```

```python
import sys, struct
from asmlib import Asm, lint

NAME = 'gated_mix__ssm_conv_s5__dense_activation_mish__prompt'
def f2h(x): return '0x%08x' % struct.unpack('<I', struct.pack('<f', x))[0]

ACTF = 0x0000000
HF   = 0x0800000
W2F  = 0x1000000
CF   = 0x1200000
SLOC = 0x1400000
EEND = 0x2000000
GATE = 0x2100000
OB   = 0x2200000
WS_SIZE = 0x4000000

KA = dict(x=0, lre=8, lim=16, bre=24, bim=32, cre=40, cim=48, logdt=56, dskip=64, bx=72, w1=80, b1=88, w2=96, gw=104, out=112, dbg=120, ws=128)

LOG2E = f2h(1.4426950408889634)
LN2 = f2h(0.6931471805599453)
M2LOG2E = f2h(-2 * 1.4426950408889634)
INV2PI = f2h(0.15915494309189535)

a = Asm()
import os
DIAG = int(os.environ.get('DIAG', '0'))
EXP = int(os.environ.get('EXP', '0'))
PF = int(os.environ.get('PF', '1'))
STAMP = 0x3000000
SR = [98, 100, 82, 80]
STU = int(os.environ.get('STU', '0'))
def stamp(a, i):
    if not DIAG: return
    a(f's_memrealtime s[{SR[i]}:{SR[i] + 1}]')
    a('s_waitcnt lgkmcnt(0)')
def stamp_flush(a, kid, n):
    if not DIAG: return
    a('s_waitcnt vmcnt(0) lgkmcnt(0)')
    a(f's_memrealtime s[{SR[n]}:{SR[n] + 1}]')
    a('s_waitcnt lgkmcnt(0)')
    lab = a.newlabel('LST')
    a('s_cmp_lg_u32 s3, 0')
    a(f's_cbranch_scc1 {lab}')
    a('s_lshl_b32 s30, s2, 6')
    a(f's_add_u32 s30, s30, {STAMP + kid * 65536}')
    a('v_mov_b32 v2, 0')
    a('s_mov_b64 exec, 1')
    for i in range(n + 1):
        a(f'v_mov_b32 v3, s{SR[i]}')
        a(f'buffer_store_dword v3, v2, s[20:23], s30 offen offset:{4 * i}')
    a.label(lab)

def srd(a, s, lo, hi_reg, size):
    a(f's_mov_b32 s{s}, s{lo}')
    a(f's_and_b32 s{s+1}, s{hi_reg}, 0xffff')
    a(f's_mov_b32 s{s+2}, {size}')
    a(f's_mov_b32 s{s+3}, 0x00020000')

def round_bf16_pair(a, x0, x1, t):
    a(f'v_cvt_pk_bf16_f32 v{t}, v{x0}, v{x1}')
    a(f'v_lshlrev_b32 v{x0}, 16, v{t}')
    a(f'v_and_b32 v{x1}, 0xffff0000, v{t}')

def mish_consts(a):
    a(f's_mov_b32 s32, {LOG2E}')
    a(f's_mov_b32 s33, {LN2}')
    a(f's_mov_b32 s34, {M2LOG2E}')
    a(f's_mov_b32 s35, {f2h(2.0**-12)}')
    a(f's_mov_b32 s36, {f2h(2.0**-6)}')

def mish_pair(a, x0, x1, out, T, want_th=False):
    e0, e1, l0, l1, s0, s1, d0, d1 = T
    a(f'v_mul_f32 v{e0}, -abs(v{x0}), s32')
    a(f'v_mul_f32 v{e1}, -abs(v{x1}), s32')
    a(f'v_exp_f32 v{e0}, v{e0}')
    a(f'v_exp_f32 v{e1}, v{e1}')
    a(f'v_max_f32 v{s0}, 0, v{x0}')
    a(f'v_max_f32 v{s1}, 0, v{x1}')
    round_bf16_pair(a, e0, e1, d0)
    a(f'v_add_f32 v{l0}, 1.0, v{e0}')
    a(f'v_add_f32 v{l1}, 1.0, v{e1}')
    a(f'v_log_f32 v{l0}, v{l0}')
    a(f'v_log_f32 v{l1}, v{l1}')
    a(f'v_cmp_gt_f32 s[38:39], s35, v{e0}')
    a(f'v_cmp_gt_f32 s[40:41], s35, v{e1}')
    a(f'v_mul_f32 v{l0}, s33, v{l0}')
    a(f'v_mul_f32 v{l1}, s33, v{l1}')
    a(f'v_cndmask_b32 v{l0}, v{l0}, v{e0}, s[38:39]')
    a(f'v_cndmask_b32 v{l1}, v{l1}, v{e1}, s[40:41]')
    round_bf16_pair(a, l0, l1, d0)
    a(f'v_add_f32 v{s0}, v{s0}, v{l0}')
    a(f'v_add_f32 v{s1}, v{s1}, v{l1}')
    round_bf16_pair(a, s0, s1, d0)
    a(f'v_mul_f32 v{e0}, s34, v{s0}')
    a(f'v_mul_f32 v{e1}, s34, v{s1}')
    a(f'v_exp_f32 v{e0}, v{e0}')
    a(f'v_exp_f32 v{e1}, v{e1}')
    a(f'v_cmp_gt_f32 s[38:39], s36, v{s0}')
    a(f'v_cmp_gt_f32 s[40:41], s36, v{s1}')
    a(f'v_add_f32 v{d0}, 1.0, v{e0}')
    a(f'v_add_f32 v{d1}, 1.0, v{e1}')
    a(f'v_rcp_f32 v{d0}, v{d0}')
    a(f'v_rcp_f32 v{d1}, v{d1}')
    a(f'v_sub_f32 v{e0}, 1.0, v{e0}')
    a(f'v_sub_f32 v{e1}, 1.0, v{e1}')
    a(f'v_mul_f32 v{e0}, v{e0}, v{d0}')
    a(f'v_mul_f32 v{e1}, v{e1}, v{d1}')
    a(f'v_cndmask_b32 v{e0}, v{e0}, v{s0}, s[38:39]')
    a(f'v_cndmask_b32 v{e1}, v{e1}, v{s1}, s[40:41]')
    round_bf16_pair(a, e0, e1, d0)
    if want_th: return
    a(f'v_mul_f32 v{e0}, v{x0}, v{e0}')
    a(f'v_mul_f32 v{e1}, v{x1}, v{e1}')
    a(f'v_cvt_pk_bf16_f32 v{out}, v{e0}, v{e1}')

def lam_compute(a, vlre, vlim, vldt, lr, li, t0, t1):
    a(f's_mov_b32 s58, {LOG2E}')
    a(f's_mov_b32 s59, {INV2PI}')
    a(f'v_lshlrev_b32 v{vlre}, 16, v{vlre}')
    a(f'v_lshlrev_b32 v{vlim}, 16, v{vlim}')
    a(f'v_lshlrev_b32 v{vldt}, 16, v{vldt}')
    a(f'v_mul_f32 v{t0}, s58, v{vldt}')
    a(f'v_exp_f32 v{t0}, v{t0}')
    a(f's_nop 0')
    a(f'v_cvt_pk_bf16_f32 v{t0}, v{t0}, v{t0}')
    a(f'v_lshlrev_b32 v{vldt}, 16, v{t0}')
    a(f'v_mul_f32 v{t0}, v{vldt}, v{vlre}')
    a(f'v_mul_f32 v{t1}, v{vldt}, v{vlim}')
    a(f'v_mul_f32 v{t0}, s58, v{t0}')
    a(f'v_mul_f32 v{t1}, s59, v{t1}')
    a(f'v_exp_f32 v{t0}, v{t0}')
    a(f'v_fract_f32 v{t1}, v{t1}')
    a(f'v_cos_f32 v{lr}, v{t1}')
    a(f'v_sin_f32 v{li}, v{t1}')
    a(f's_nop 0')
    a(f'v_mul_f32 v{lr}, v{lr}, v{t0}')
    a(f'v_mul_f32 v{li}, v{li}, v{t0}')

LUTB = 0
XB = [16384, 32768, 49152]
WB = [65536, 98304, 131072]
K1_LDS = 163840
ACC = 128
def acc(mt, jt): return ACC + (mt * 2 + jt) * 16
FX = [24, 48]
FW = [40, 64]
LUT_LO2 = (117 << 7) << 1
LUT_N = 14 * 128 * 2

def k1_dma(a, s, mlp):
    if EXP == 2 and s > 1: return
    b = s % 3
    rowstep = 8 if mlp else 4
    for ii in range(4):
        a(f's_add_u32 m0, s28, {XB[b] + ii * 1024}')
        a(f's_add_u32 s30, s26, {ii * rowstep * 1280 + 128 * s}')
        a(f'buffer_load_dwordx4 v{4 + (ii & 1)}, s[8:11], s30 offen lds')
    for jj in range(8):
        a(f's_add_u32 m0, s29, {WB[b] + jj * 1024}')
        if mlp:
            a(f's_add_u32 s30, s27, {(64 * s + 2 * jj) * 3072}')
            a(f'buffer_load_dwordx4 v{6 + (jj & 1)}, s[12:15], s30 offen lds')
        else:
            a(f's_add_u32 s30, s27, {(jj & 3) * 8 * 1280 + 128 * s}')
            sr = 12 if jj < 4 else 16
            a(f'buffer_load_dwordx4 v{6 + (jj & 1)}, s[{sr}:{sr+3}], s30 offen lds')

def k1_reads(a, s, ks, st, mlp):
    b = s % 3
    n = 0
    for mt in range(4):
        r = FX[st] + mt * 4
        a(f'ds_read_b128 v[{r}:{r+3}], v{8 + ks} offset:{XB[b] + mt * 4096}'); n += 1
    for jt in range(2):
        r = FW[st] + jt * 4
        if mlp:
            base = 12 + jt if b < 2 else 16 + jt
            off = (b if b < 2 else 0) * 32768 + ks * 8192
            a(f'ds_read_b64_tr_b16 v[{r}:{r+1}], v{base} offset:{off}'); n += 1
            a(f'ds_read_b64_tr_b16 v[{r+2}:{r+3}], v{base} offset:{off + 2048}'); n += 1
        else:
            base = 12 + ks if b < 2 else 16 + ks
            off = (b if b < 2 else 0) * 32768 + jt * 4096
            a(f'ds_read_b128 v[{r}:{r+3}], v{base} offset:{off}'); n += 1
    return n

def k1_mfma(a, st, mlp):
    for mt in range(4):
        for jt in range(2):
            x = FX[st] + mt * 4; w = FW[st] + jt * 4; c = acc(mt, jt)
            if mlp:
                a(f'v_mfma_f32_32x32x16_bf16 v[{c}:{c+15}], v[{w}:{w+3}], v[{x}:{x+3}], v[{c}:{c+15}]')
            else:
                a(f'v_mfma_f32_32x32x16_bf16 v[{c}:{c+15}], v[{x}:{x+3}], v[{w}:{w+3}], v[{c}:{c+15}]')

NS = 10
def k1_mainloop(a, mlp):
    for s in range(NS):
        a('s_barrier')
        if s == 0: stamp(a, 1)
        if EXP == 1: continue
        n = k1_reads(a, s, 0, 0, mlp)
        for ks in range(4):
            st = ks & 1
            if ks < 3:
                n2 = k1_reads(a, s, ks + 1, st ^ 1, mlp)
                a(f's_waitcnt lgkmcnt({n2})')
            else:
                a('s_waitcnt lgkmcnt(0)')
            k1_mfma(a, st, mlp)

def k1_loader(a, mlp):
    k1_dma(a, 0, mlp)
    k1_dma(a, 1, mlp)
    npf = 0
    if PF:
        a('v_and_b32 v84, 31, v1')
        a('s_movk_i32 s30, 1280')
        a('v_mul_lo_u32 v84, v84, s30')
        a('v_lshl_add_u32 v84, v72, 7, v84')
        a('s_lshl_b32 s30, s24, 7')
        a('s_lshl_b32 s31, s3, 5')
        a('s_add_u32 s30, s30, s31')
        a('s_mul_i32 s30, s30, 1280')
        if mlp:
            a('v_lshrrev_b32 v90, 2, v1')
            a('s_movk_i32 s31, 3072')
            a('v_mul_lo_u32 v90, v90, s31')
            a('v_and_b32 v91, 3, v1')
            a('v_lshl_add_u32 v90, v91, 7, v90')
            a('s_lshl_b32 s53, s43, 6')
            a('s_add_u32 s53, s53, 128')
            a('s_mul_i32 s53, s53, 3072')
            a('s_add_u32 s53, s53, s27')
        else:
            a('s_movk_i32 s31, 1280')
            a('v_mul_lo_u32 v90, v2, s31')
            a('v_lshl_add_u32 v90, v20, 7, v90')
            a('v_add_u32 v90, 256, v90')
            a('s_and_b32 s31, s43, 1')
            a('s_cmp_eq_u32 s31, 0')
            a('s_cselect_b32 s48, s12, s16')
            a('s_cselect_b32 s49, s13, s17')
            a('s_mov_b32 s50, s14')
            a('s_mov_b32 s51, s15')
            a('s_lshr_b32 s53, s43, 1')
            a('s_lshl_b32 s53, s53, 5')
            a('s_lshl_b32 s31, s25, 7')
            a('s_add_u32 s53, s53, s31')
            a('s_lshl_b32 s31, s3, 3')
            a('s_add_u32 s53, s53, s31')
            a('s_mul_i32 s53, s53, 1280')
        for q in range(4):
            a(f'buffer_load_dword v{85 + q}, v84, s[8:11], s30 offen offset:{256 + 256 * q}')
            if q == 0:
                if mlp: a('buffer_load_dword v89, v90, s[12:15], s53 offen')
                else: a('buffer_load_dword v89, v90, s[48:51], s53 offen')
        npf = 5
    for s in range(NS):
        a(f's_waitcnt vmcnt({((12 + (npf if s < 2 else 0)) if s < NS - 1 else 0) if EXP != 2 else 0})')
        a('s_barrier')
        if s + 2 < NS:
            k1_dma(a, s + 2, mlp)
    a('s_endpgm')

def gen_k1(a):
    a.raw('.p2align 8')
    a.label('k1_kernel')
    a('s_cmp_ge_u32 s2, 256')
    a('s_cbranch_scc1 K1_END')
    a('s_load_dwordx16 s[64:79], s[0:1], 0')
    a('s_load_dwordx16 s[80:95], s[0:1], 64')
    a('s_load_dwordx2 s[96:97], s[0:1], 128')
    a('v_lshrrev_b32 v2, 6, v0')
    a('v_and_b32 v1, 63, v0')
    a('v_readfirstlane_b32 s52, v2')
    a('s_and_b32 s3, s52, 3')
    a('s_waitcnt lgkmcnt(0)')
    srd(a, 8, 64, 65, 2621440)
    srd(a, 20, 96, 97, WS_SIZE)
    stamp(a, 0)
    a('s_and_b32 s44, s2, 7')
    a('s_lshr_b32 s45, s2, 3')
    a('s_lshr_b32 s46, s44, 1')
    a('s_cmp_eq_u32 s46, 3')
    a('s_cselect_b32 s47, 16, 24')
    a('s_cmp_ge_u32 s45, s47')
    a('s_cbranch_scc1 K1_SIDE')
    a('s_and_b32 s43, s45, 7')
    a('s_and_b32 s24, s44, 1')
    a('s_lshl_b32 s24, s24, 3')
    a('s_add_u32 s24, s24, s43')
    a('s_mul_i32 s25, s46, 3')
    a('s_lshr_b32 s45, s45, 3')
    a('s_add_u32 s25, s25, s45')
    a('s_lshl_b32 s28, s3, 12')
    a('s_lshl_b32 s29, s3, 13')
    a('v_lshrrev_b32 v72, 5, v1')
    a('s_cmp_lt_u32 s52, 4')
    a('s_cbranch_scc1 K1_COMPUTE')

    a('v_lshrrev_b32 v2, 3, v1')
    a('v_lshrrev_b32 v3, 4, v1')
    a('v_and_b32 v20, 7, v1')
    a('v_xor_b32 v21, v20, v3')
    a('v_xor_b32 v22, 4, v21')
    a('v_lshlrev_b32 v21, 4, v21')
    a('v_lshlrev_b32 v22, 4, v22')
    a('s_cmp_ge_u32 s25, 5')
    a('s_cbranch_scc1 K1_LD_MLP')
    a('v_and_b32 v74, 3, v2')
    a('v_lshl_add_u32 v74, v72, 6, v74')
    a('s_movk_i32 s30, 1280')
    a('v_mul_lo_u32 v74, v74, s30')
    a('v_add_u32 v4, v74, v21')
    a('v_add_u32 v5, v74, v22')
    a('v_mul_lo_u32 v74, v2, s30')
    a('v_add_u32 v6, v74, v21')
    a('v_add_u32 v7, v74, v22')
    a('s_lshl_b32 s26, s24, 7')
    a('s_lshl_b32 s30, s3, 4')
    a('s_add_u32 s26, s26, s30')
    a('s_mul_i32 s26, s26, 1280')
    a('s_lshl_b32 s42, s25, 7')
    a('s_lshl_b32 s30, s3, 5')
    a('s_add_u32 s42, s42, s30')
    a('s_mul_i32 s27, s42, 1280')
    srd(a, 12, 70, 71, 819200)
    srd(a, 16, 72, 73, 819200)
    k1_loader(a, False)
    a.label('K1_LD_MLP')
    a('s_sub_u32 s25, s25, 5')
    a('s_movk_i32 s30, 1280')
    a('v_mul_lo_u32 v74, v2, s30')
    a('v_add_u32 v4, v74, v21')
    a('v_add_u32 v5, v74, v22')
    a('v_and_b32 v74, 31, v1')
    a('v_lshlrev_b32 v75, 2, v72')
    a('v_xor_b32 v74, v74, v75')
    a('v_xor_b32 v75, 8, v74')
    a('s_movk_i32 s30, 3072')
    a('v_mul_lo_u32 v76, v72, s30')
    a('v_lshl_add_u32 v6, v74, 4, v76')
    a('v_lshl_add_u32 v7, v75, 4, v76')
    a('s_lshl_b32 s26, s24, 7')
    a('s_lshl_b32 s30, s3, 5')
    a('s_add_u32 s26, s26, s30')
    a('s_mul_i32 s26, s26, 1280')
    a('s_mul_i32 s27, s3, 49152')
    a('s_lshl_b32 s30, s25, 9')
    a('s_add_u32 s27, s27, s30')
    srd(a, 12, 84, 85, 1966080)
    k1_loader(a, True)

    a.label('K1_COMPUTE')
    a('v_lshrrev_b32 v3, 4, v1')
    a('v_and_b32 v23, 31, v1')
    a('v_lshlrev_b32 v23, 7, v23')
    a('v_bfe_u32 v73, v1, 1, 3')
    for ks in range(4):
        a(f'v_add_u32 v74, {2 * ks}, v72')
        a('v_xor_b32 v74, v74, v73')
        a(f'v_lshl_add_u32 v{8 + ks}, v74, 4, v23')
    a('s_cmp_ge_u32 s25, 5')
    a('s_cbranch_scc1 K1_MLP')

    a('s_lshl_b32 s42, s25, 7')
    a('s_lshl_b32 s30, s3, 5')
    a('s_add_u32 s42, s42, s30')
    a(f's_add_u32 s30, s29, {WB[0]}')
    for ks in range(4):
        a(f'v_add_u32 v{12 + ks}, s30, v{8 + ks}')
        a(f'v_add_u32 v{16 + ks}, 0x10000, v{12 + ks}')
    a('v_and_b32 v75, 31, v1')
    a('v_add_u32 v75, s42, v75')
    a('v_lshlrev_b32 v76, 1, v75')
    a('global_load_ushort v77, v76, s[66:67]')
    a('global_load_ushort v78, v76, s[68:69]')
    a('global_load_ushort v79, v76, s[78:79]')
    a('v_mov_b32 v84, 0')
    a('global_load_dword v85, v84, s[94:95] sc1')
    a('v_lshlrev_b32 v83, 4, v75')
    a(f'v_add_u32 v83, {EEND}, v83')
    a('buffer_load_dword v86, v83, s[20:23], 0 offen sc1')
    for i in range(128):
        a(f'v_mov_b32 v{ACC + i}, 0')
    a('s_waitcnt vmcnt(0)')
    lam_compute(a, 77, 78, 79, 80, 81, 82, 83)
    k1_mainloop(a, False)
    stamp(a, 0 if STU else 2)
    a('s_nop 15')
    def rr(j): return acc(j >> 4, 0) + (j & 15)
    def ri(j): return acc(j >> 4, 1) + (j & 15)
    for j in range(1, 64):
        a(f'v_fma_f32 v{rr(j)}, -v81, v{ri(j-1)}, v{rr(j)}')
        a(f'v_fma_f32 v{ri(j)}, v81, v{rr(j-1)}, v{ri(j)}')
        a(f'v_fma_f32 v{rr(j)}, v80, v{rr(j-1)}, v{rr(j)}')
        a(f'v_fma_f32 v{ri(j)}, v80, v{ri(j-1)}, v{ri(j)}')
    a('v_lshlrev_b32 v83, 4, v75')
    a('v_lshl_add_u32 v83, v72, 3, v83')
    a(f'v_add_u32 v83, {EEND}, v83')
    a('s_mul_i32 s31, s24, 10240')
    a(f'v_mov_b32 v48, v{rr(63)}')
    a(f'v_mov_b32 v49, v{ri(63)}')
    a('buffer_store_dwordx2 v[48:49], v83, s[20:23], s31 offen sc1')
    a('s_nop 1')
    a('v_add_f32 v48, -1.0, v80')
    a('v_mul_f32 v49, v77, v77')
    a('v_fma_f32 v49, v78, v78, v49')
    a('v_rcp_f32 v49, v49')
    a('v_mul_f32 v44, v48, v77')
    a('v_fma_f32 v44, v81, v78, v44')
    a('v_mul_f32 v45, v81, v77')
    a('v_fma_f32 v45, -v48, v78, v45')
    a('v_add_f32 v49, v49, v49')
    a('v_mul_f32 v44, v44, v49')
    a('v_mul_f32 v45, v45, v49')
    def csq(dr, di, sr, si):
        a(f'v_mul_f32 v48, v{si}, v{si}')
        a(f'v_mul_f32 v49, v{sr}, v{si}')
        a(f'v_fma_f32 v{dr}, v{sr}, v{sr}, -v48')
        a(f'v_add_f32 v{di}, v49, v49')
    csq(46, 47, 80, 81)
    for _ in range(5): csq(46, 47, 46, 47)
    a('s_waitcnt vmcnt(0)')
    a('s_barrier')
    if STU: stamp(a, 1)
    a('s_lshl_b32 s53, 1, s24')
    a('s_sub_u32 s54, s53, 1')
    a('s_lshl_b32 s30, s25, 2')
    a('v_mov_b32 v50, s30')
    a('v_mov_b32 v51, s53')
    a('s_cmp_lg_u32 s3, 0')
    a('s_cbranch_scc1 K1_U_NOAT')
    a('s_mov_b64 s[56:57], exec')
    a('s_mov_b64 exec, 1')
    a('global_atomic_or v50, v51, s[94:95]')
    a('s_mov_b64 exec, s[56:57]')
    a.label('K1_U_NOAT')
    for j in range(64):
        a(f'v_mul_f32 v57, v45, v{ri(j)}')
        a(f'v_mul_f32 v58, v45, v{rr(j)}')
        a(f'v_fma_f32 v{rr(j)}, v44, v{rr(j)}, -v57')
        a(f'v_fma_f32 v{ri(j)}, -v44, v{ri(j)}, -v58')
    a('s_cmp_lg_u32 s3, 0')
    a('s_cbranch_scc1 K1_U_WAITED')
    a('s_mov_b64 s[56:57], exec')
    a('s_mov_b64 exec, 1')
    a('s_mov_b32 s55, 0')
    a.label('K1_U_POLL')
    a('global_load_dword v52, v50, s[94:95] sc1')
    a('s_waitcnt vmcnt(0)')
    a('v_readfirstlane_b32 s30, v52')
    a('s_and_b32 s30, s30, s54')
    a('s_cmp_eq_u32 s30, s54')
    a('s_cbranch_scc1 K1_U_POLLED')
    a('s_add_u32 s55, s55, 1')
    a('s_cmp_gt_u32 s55, 0x40000')
    a('s_cbranch_scc1 K1_U_POLLED')
    a('s_sleep 1')
    a('s_branch K1_U_POLL')
    a.label('K1_U_POLLED')
    a('s_mov_b64 exec, s[56:57]')
    a.label('K1_U_WAITED')
    a('s_barrier')
    if STU == 1: stamp(a, 2)
    def er(c): return (84 + 4 * c) if c < 11 else (24 + 4 * (c - 11))
    a('v_lshlrev_b32 v83, 4, v75')
    a(f'v_add_u32 v83, {EEND}, v83')
    for c in range(16):
        if c:
            a(f's_cmp_lt_u32 s24, {c}')
            a('s_cbranch_scc1 K1_U_ELD')
        a(f's_mov_b32 s30, {c * 10240}')
        a(f'buffer_load_dwordx4 v[{er(c)}:{er(c)+3}], v83, s[20:23], s30 offen sc1')
    a.label('K1_U_ELD')
    a('v_mov_b32 v50, 0')
    a('v_mov_b32 v51, 0')
    a('s_waitcnt vmcnt(0)')
    for c in range(16):
        a(f'v_fma_f32 v52, -v47, v51, v{er(c)}')
        a(f'v_fma_f32 v53, v47, v50, v{er(c)+1}')
        a('v_fma_f32 v52, v46, v50, v52')
        a('v_fma_f32 v53, v46, v51, v53')
        a(f's_cmp_eq_u32 s24, {c}')
        a('s_cbranch_scc1 K1_U_CARRY')
        a(f'v_fma_f32 v50, -v47, v53, v{er(c)+2}')
        a(f'v_fma_f32 v51, v47, v52, v{er(c)+3}')
        a('v_fma_f32 v50, v46, v52, v50')
        a('v_fma_f32 v51, v46, v53, v51')
    a.label('K1_U_CARRY')
    if STU == 2: stamp(a, 2)
    a('v_cmp_eq_u32 vcc, 1, v72')
    a('s_nop 1')
    a('v_cndmask_b32 v50, v50, v52, vcc')
    a('v_cndmask_b32 v51, v51, v53, vcc')
    a('v_mul_f32 v52, v81, v51')
    a('v_mul_f32 v53, v81, v50')
    a('v_fma_f32 v54, v80, v50, -v52')
    a('v_fma_f32 v55, v80, v51, v53')
    a('v_and_b32 v56, 31, v1')
    a('s_lshl_b32 s30, s3, 5')
    a('v_add_u32 v56, s30, v56')
    a('v_mul_u32_u24 v56, 272, v56')
    a('v_lshl_add_u32 v56, v72, 7, v56')
    a('v_mul_f32 v52, v45, v55')
    a('v_mul_f32 v53, v45, v54')
    a('v_fma_f32 v57, v44, v54, -v52')
    a('v_fma_f32 v55, -v44, v55, -v53')
    a('v_mov_b32 v54, v57')
    for j in range(64):
        a(f'v_add_f32 v{rr(j)}, v{rr(j)}, v54')
        a(f'v_add_f32 v{ri(j)}, v{ri(j)}, v55')
        if j < 63:
            a('v_mul_f32 v52, v81, v55')
            a('v_mul_f32 v53, v81, v54')
            a('v_fma_f32 v54, v80, v54, v52')
            a('v_fma_f32 v55, v80, v55, -v53')
        if (j & 7) == 7:
            q = j >> 3
            for part, rf in ((0, rr), (1, ri)):
                o = 60 + part * 4
                for i in range(4):
                    a(f'v_cvt_pk_bf16_f32 v{o + i}, v{rf(8 * q + 2 * i)}, v{rf(8 * q + 2 * i + 1)}')
                a(f'ds_write_b128 v56, v[{o}:{o+3}] offset:{part * 34816 + q * 16}')
    a('v_lshrrev_b32 v57, 4, v1')
    a('v_bfe_u32 v58, v1, 2, 2')
    a('v_lshl_add_u32 v57, v57, 3, v58')
    a('v_add_u32 v57, s30, v57')
    a('v_mul_u32_u24 v57, 272, v57')
    a('v_and_b32 v58, 3, v1')
    a('v_lshl_add_u32 v57, v58, 3, v57')
    a('v_lshlrev_b32 v58, 4, v1')
    a('s_mul_i32 s31, s24, 80')
    a('s_lshl_b32 s30, s25, 2')
    a('s_add_u32 s31, s31, s30')
    a('s_add_u32 s31, s31, s3')
    a('s_lshl_b32 s31, s31, 12')
    a(f's_add_u32 s31, s31, {HF}')
    a('s_waitcnt lgkmcnt(0)')
    for part in range(2):
        for tb in range(8):
            r = 128 + (part * 8 + tb) * 4
            a(f'ds_read_b64_tr_b16 v[{r}:{r+1}], v57 offset:{part * 34816 + tb * 32}')
            a(f'ds_read_b64_tr_b16 v[{r+2}:{r+3}], v57 offset:{part * 34816 + 1088 + tb * 32}')
    for part in range(2):
        for tb in range(8):
            k = part * 8 + tb
            r = 128 + k * 4
            a(f's_waitcnt lgkmcnt({min(15, 2 * (15 - k))})')
            off = ((tb >> 2) * 40 + part * 20) * 4096 + (tb & 3) * 1024
            a(f's_add_u32 s30, s31, {off}')
            a(f'buffer_store_dwordx4 v[{r}:{r+3}], v58, s[20:23], s30 offen')
    stamp_flush(a, 0, 3)
    a('s_branch K1_END')

    a.label('K1_MLP')
    a('s_sub_u32 s25, s25, 5')
    a('v_bfe_u32 v74, v1, 2, 2')
    a('v_lshl_add_u32 v75, v72, 3, v74')
    a('v_lshlrev_b32 v75, 9, v75')
    a('v_bfe_u32 v76, v1, 1, 1')
    a('v_lshl_add_u32 v75, v76, 3, v75')
    a('v_and_b32 v76, 1, v3')
    a('v_and_b32 v77, 1, v1')
    a('v_lshl_add_u32 v76, v76, 1, v77')
    a('s_lshl_b32 s30, s3, 3')
    a('v_add_u32 v76, s30, v76')
    a('v_lshlrev_b32 v74, 2, v74')
    for jt in range(2):
        a(f'v_add_u32 v77, {4 * jt}, v76')
        a('v_xor_b32 v77, v77, v74')
        a(f'v_lshl_add_u32 v{12 + jt}, v77, 4, v75')
        a(f'v_add_u32 v{12 + jt}, {WB[0]}, v{12 + jt}')
        a(f'v_add_u32 v{16 + jt}, 0x10000, v{12 + jt}')
    a('s_lshl_b32 s42, s25, 8')
    a('s_lshl_b32 s30, s3, 6')
    a('s_add_u32 s42, s42, s30')
    a('v_lshlrev_b32 v74, 4, v72')
    a('s_lshl_b32 s30, s42, 1')
    a('v_add_u32 v74, s30, v74')
    for jt in range(2):
        for ap in range(2):
            r = 96 + (jt * 2 + ap) * 4
            a(f'global_load_dwordx4 v[{r}:{r+3}], v74, s[86:87] offset:{(32 * jt + 16 * ap) * 2}')
    mish_consts(a)
    T = list(range(56, 64))
    a('v_and_b32 v24, 1, v0')
    a('v_lshlrev_b32 v24, 31, v24')
    a(f'v_add_u32 v25, {LUT_LO2}, v0')
    a('v_lshrrev_b32 v25, 1, v25')
    a('v_lshl_or_b32 v25, v25, 16, v24')
    a('v_lshlrev_b32 v26, 2, v0')
    for i in range(0, 14, 2):
        a(f'v_add_u32 v27, {(128 * i) << 16}, v25')
        a(f'v_add_u32 v28, {(128 * (i + 1)) << 16}, v25')
        mish_pair(a, 27, 28, None, T, want_th=True)
        a(f'ds_write_b32 v26, v{T[0]} offset:{LUTB + 1024 * i}')
        a(f'ds_write_b32 v26, v{T[1]} offset:{LUTB + 1024 * (i + 1)}')
    for i in range(128):
        a(f'v_mov_b32 v{ACC + i}, 0')
    a('s_waitcnt lgkmcnt(0)')
    k1_mainloop(a, True)
    stamp(a, 2)
    a('s_waitcnt vmcnt(0)')
    for jt in range(2):
        for ap in range(2):
            for i in range(4):
                src = 96 + (jt * 2 + ap) * 4 + i
                d = 24 + jt * 16 + ap * 8 + i * 2
                a(f'v_lshlrev_b32 v{d}, 16, v{src}')
                a(f'v_and_b32 v{d+1}, 0xffff0000, v{src}')
    a('v_bfe_u32 v74, v1, 4, 1')
    a('v_lshlrev_b32 v74, 10, v74')
    a('v_and_b32 v75, 15, v1')
    a('v_lshl_add_u32 v74, v75, 4, v74')
    a('v_lshl_add_u32 v74, v72, 8, v74')
    a('s_mul_i32 s31, s24, 393216')
    a('s_lshl_b32 s30, s42, 7')
    a('s_add_u32 s31, s31, s30')
    if ACTF: a(f's_add_u32 s31, s31, {ACTF}')
    a(f's_mov_b32 s37, {LUT_LO2 | (LUT_LO2 << 16)}')
    a('v_mov_b32 v75, 0')
    groups = [(mt, jt, ap) for mt in range(4) for jt in range(2) for ap in range(2)]
    def stage_a(g, k):
        mt, jt, ap = g
        for i in range(4):
            c0 = acc(mt, jt) + ap * 8 + i * 2
            b0 = 24 + jt * 16 + ap * 8 + i * 2
            t = 112 + 2 * i
            a(f'v_cvt_pk_bf16_f32 v{t}, v{c0}, v{c0+1}')
            a(f'v_lshlrev_b32 v{c0}, 16, v{t}')
            a(f'v_and_b32 v{c0+1}, 0xffff0000, v{t}')
            a(f'v_add_f32 v{c0}, v{c0}, v{b0}')
            a(f'v_add_f32 v{c0+1}, v{c0+1}, v{b0+1}')
            a(f'v_cvt_pk_bf16_f32 v{t}, v{c0}, v{c0+1}')
            a(f'v_lshlrev_b32 v{c0}, 16, v{t}')
            a(f'v_and_b32 v{c0+1}, 0xffff0000, v{t}')
            a(f'v_pk_lshlrev_b16 v{t+1}, 1, v{t} op_sel_hi:[0,1]')
            a(f'v_pk_lshrrev_b16 v{t}, 15, v{t} op_sel_hi:[0,1]')
            a(f'v_or_b32 v{t}, v{t}, v{t+1}')
            a(f'v_pk_sub_u16 v{t}, v{t}, s37 clamp')
            a(f'v_pk_max_u16 v75, v75, v{t}')
            a(f'v_lshlrev_b32_sdwa v{t+1}, 2, v{t} dst_sel:DWORD dst_unused:UNUSED_PAD src0_sel:DWORD src1_sel:WORD_1')
            a(f'v_lshlrev_b32_sdwa v{t}, 2, v{t} dst_sel:DWORD dst_unused:UNUSED_PAD src0_sel:DWORD src1_sel:WORD_0')
            a(f'ds_read_b32 v{96 + 8 * k + 2 * i}, v{t} offset:{LUTB}')
            a(f'ds_read_b32 v{97 + 8 * k + 2 * i}, v{t+1} offset:{LUTB}')
    def store_g(g, outr):
        mt, jt, ap = g
        off = (mt >> 1) * 196608 + jt * 4096 + 2 * (mt & 1) * 1024 + ap * 512
        a(f's_add_u32 s30, s31, {off}')
        a(f'buffer_store_dwordx4 v[{outr}:{outr+3}], v74, s[20:23], s30 offen')
    def stage_b(g, k):
        mt, jt, ap = g
        outr = 64 + 4 * k
        for i in range(4):
            c0 = acc(mt, jt) + ap * 8 + i * 2
            th = 96 + 8 * k + 2 * i
            a(f'v_mul_f32 v{th}, v{th}, v{c0}')
            a(f'v_mul_f32 v{th+1}, v{th+1}, v{c0+1}')
            a(f'v_cvt_pk_bf16_f32 v{outr + i}, v{th}, v{th+1}')
        store_g(g, outr)
    stage_a(groups[0], 0)
    for gi in range(16):
        k = gi & 1
        if gi + 1 < 16:
            stage_a(groups[gi + 1], k ^ 1)
            a('s_waitcnt lgkmcnt(8)')
        else:
            a('s_waitcnt lgkmcnt(0)')
        stage_b(groups[gi], k)
    a(f's_mov_b32 s30, {(LUT_N - 1) | ((LUT_N - 1) << 16)}')
    a('v_pk_sub_u16 v76, v75, s30 clamp')
    a('v_cmp_ne_u32 vcc, 0, v76')
    a('s_cbranch_vccz K1_MLP_DONE')
    a('s_waitcnt vmcnt(0)')
    for gi, g in enumerate(groups):
        mt, jt, ap = g
        outr = 64 + 4 * (gi & 1)
        for i in range(4):
            c0 = acc(mt, jt) + ap * 8 + i * 2
            mish_pair(a, c0, c0 + 1, outr + i, T)
        store_g(g, outr)
    a.label('K1_MLP_DONE')
    stamp_flush(a, 0, 3)
    a('s_branch K1_END')

    a.label('K1_SIDE')
    a('s_sub_u32 s24, s45, s47')
    a('s_lshl_b32 s30, s44, 3')
    a('s_sub_u32 s31, s44, 6')
    a('s_lshl_b32 s31, s31, 4')
    a('s_add_u32 s31, s31, 48')
    a('s_cmp_eq_u32 s46, 3')
    a('s_cselect_b32 s30, s31, s30')
    a('s_add_u32 s24, s24, s30')
    a('s_lshl_b32 s24, s24, 3')
    a('s_add_u32 s24, s24, s52')
    a('v_lshlrev_b32 v2, 2, v1')
    a('v_and_b32 v3, 15, v1')
    a('v_lshrrev_b32 v6, 4, v1')
    a('s_movk_i32 s30, 10240')
    a('v_mul_lo_u32 v4, v6, s30')
    a('v_lshl_add_u32 v4, v3, 1, v4')
    a('v_lshlrev_b32 v5, 4, v1')
    a('s_movk_i32 s30, 1280')
    a('v_mul_lo_u32 v7, v3, s30')
    a('v_lshl_add_u32 v7, v6, 4, v7')
    srd(a, 12, 88, 89, 1966080)
    srd(a, 16, 74, 75, 819200)
    srd(a, 48, 76, 77, 819200)
    for j in range(5):
        a(f'global_load_dword v{10 + j}, v2, s[90:91] offset:{256 * j}')
    for i in range(4):
        a(f's_add_u32 s30, s24, {640 * i}')
        a('s_mul_i32 s30, s30, 1280')
        for j in range(5):
            a(f'buffer_load_dword v{16 + 5 * i + j}, v2, s[8:11], s30 offen offset:{256 * j}')
    for i in range(3):
        a(f's_add_u32 s25, s24, {640 * i}')
        a('s_mov_b32 s30, 0x01111112')
        a('s_mul_hi_u32 s40, s25, s30')
        a('s_mul_i32 s41, s40, 240')
        a('s_sub_u32 s41, s25, s41')
        a('s_mov_b32 s30, 0x33333334')
        a('s_mul_hi_u32 s42, s41, s30')
        a('s_mul_i32 s43, s42, 5')
        a('s_sub_u32 s43, s41, s43')
        a('s_mul_i32 s40, s40, 160')
        a('s_lshl_b32 s43, s43, 5')
        a('s_mul_i32 s42, s42, 40960')
        a('s_add_u32 s30, s40, s43')
        a('s_add_u32 s30, s30, s42')
        for k in range(8):
            if k: a('s_add_u32 s30, s30, 1280')
            a(f'buffer_load_ushort v{40 + 8 * i + k}, v4, s[12:15], s30 offen')
    for i in range(3):
        lab = a.newlabel('K1_CF')
        a(f's_add_u32 s25, s24, {640 * i}')
        a('s_mov_b32 s30, 0x0147ae15')
        a('s_mul_hi_u32 s40, s25, s30')
        a('s_mul_i32 s41, s40, 200')
        a('s_sub_u32 s41, s25, s41')
        a('s_mov_b32 s30, 0x33333334')
        a('s_mul_hi_u32 s42, s41, s30')
        a('s_mul_i32 s43, s42, 5')
        a('s_sub_u32 s43, s41, s43')
        a('s_mul_i32 s40, s40, 102400')
        a('s_mul_i32 s43, s43, 20480')
        a('s_add_u32 s30, s40, s43')
        a('s_cmp_ge_u32 s42, 20')
        a(f's_cbranch_scc1 {lab}_im')
        a('s_lshl_b32 s42, s42, 6')
        a('s_add_u32 s30, s30, s42')
        a(f'buffer_load_dwordx4 v[{64 + 4 * i}:{67 + 4 * i}], v7, s[16:19], s30 offen')
        a(f's_branch {lab}_done')
        a.label(f'{lab}_im')
        a('s_sub_u32 s42, s42, 20')
        a('s_lshl_b32 s42, s42, 6')
        a('s_add_u32 s30, s30, s42')
        a(f'buffer_load_dwordx4 v[{64 + 4 * i}:{67 + 4 * i}], v7, s[48:51], s30 offen')
        a.label(f'{lab}_done')
    a('s_waitcnt vmcnt(0)')
    for i in range(3):
        for k in range(4):
            a(f'v_lshl_or_b32 v{80 + 4 * i + k}, v{41 + 8 * i + 2 * k}, 16, v{40 + 8 * i + 2 * k}')
        a(f's_add_u32 s30, s24, {640 * i}')
        a('s_lshl_b32 s30, s30, 10')
        a(f's_add_u32 s30, s30, {W2F}')
        a(f'buffer_store_dwordx4 v[{80 + 4 * i}:{83 + 4 * i}], v5, s[20:23], s30 offen')
    for i in range(3):
        lab = a.newlabel('K1_CFS')
        a(f's_add_u32 s30, s24, {640 * i}')
        if i == 2:
            a('s_cmp_ge_u32 s30, 1600')
            a(f's_cbranch_scc1 {lab}')
        a('s_lshl_b32 s30, s30, 10')
        a(f's_add_u32 s30, s30, {CF}')
        a(f'buffer_store_dwordx4 v[{64 + 4 * i}:{67 + 4 * i}], v5, s[20:23], s30 offen')
        a.label(lab)
    for j in range(5):
        a(f'v_lshlrev_b32 v{100 + 2 * j}, 16, v{10 + j}')
        a(f'v_and_b32 v{101 + 2 * j}, 0xffff0000, v{10 + j}')
    a(f's_mov_b32 s60, {f2h(-1.4426950408889634)}')
    for i in range(4):
        lab = a.newlabel('K1_G')
        a(f's_add_u32 s25, s24, {640 * i}')
        if i == 3:
            a('s_cmp_ge_u32 s25, 2048')
            a(f's_cbranch_scc1 {lab}')
        a('v_mov_b32 v120, 0')
        for j in range(5):
            a(f'v_lshlrev_b32 v110, 16, v{16 + 5 * i + j}')
            a(f'v_and_b32 v111, 0xffff0000, v{16 + 5 * i + j}')
            a(f'v_mul_f32 v110, v110, v{100 + 2 * j}')
            a(f'v_mul_f32 v111, v111, v{101 + 2 * j}')
            round_bf16_pair(a, 110, 111, 112)
            a('v_add_f32 v120, v120, v110')
            a('v_add_f32 v120, v120, v111')
        for sh in (1, 2, 4, 8):
            a('s_nop 1')
            a(f'v_add_f32_dpp v120, v120, v120 row_shr:{sh} row_mask:0xf bank_mask:0xf')
        a('s_nop 1')
        a('v_readlane_b32 s40, v120, 15')
        a('v_readlane_b32 s41, v120, 31')
        a('v_readlane_b32 s42, v120, 47')
        a('v_readlane_b32 s43, v120, 63')
        a('s_nop 1')
        a('v_mov_b32 v121, s40')
        a('v_add_f32 v121, s41, v121')
        a('v_add_f32 v121, s42, v121')
        a('v_add_f32 v121, s43, v121')
        a('v_cvt_pk_bf16_f32 v121, v121, v121')
        a('v_lshlrev_b32 v121, 16, v121')
        a('v_mul_f32 v122, s60, v121')
        a('v_exp_f32 v122, v122')
        a('s_nop 0')
        a('v_add_f32 v122, 1.0, v122')
        a('v_rcp_f32 v122, v122')
        a('s_nop 0')
        a('v_cvt_pk_bf16_f32 v122, v122, v122')
        a('v_lshlrev_b32 v122, 16, v122')
        a('v_sub_f32 v123, 1.0, v122')
        a('v_cvt_pk_bf16_f32 v123, v123, v123')
        a('v_lshlrev_b32 v123, 16, v123')
        a('s_lshl_b32 s30, s25, 3')
        a(f's_add_u32 s30, s30, {GATE}')
        a('v_mov_b32 v124, 0')
        a('s_mov_b64 s[40:41], exec')
        a('s_mov_b64 exec, 1')
        a('buffer_store_dwordx2 v[122:123], v124, s[20:23], s30 offen')
        a('s_mov_b64 exec, s[40:41]')
        a.label(lab)
    stamp(a, 1)
    stamp(a, 2)
    a('s_mov_b32 s3, s52')
    stamp_flush(a, 0, 3)
    a.label('K1_END')
    a('s_endpgm')

def qacc(fa, fb): return (fa * 5 + fb) * 4
QD = 5
def qfr(st, i): return 16 + st * 36 + i * 4

def q_loads(a, st):
    for fa in range(4):
        r = qfr(st, fa)
        a(f'buffer_load_dwordx4 v[{r}:{r+3}], v2, s[20:23], s26 offen offset:{fa * 1024}')
    for fb in range(5):
        r = qfr(st, 4 + fb)
        if fb < 4:
            a(f'buffer_load_dwordx4 v[{r}:{r+3}], v2, s[20:23], s27 offen offset:{fb * 1024}')
        else:
            a(f'buffer_load_dwordx4 v[{r}:{r+3}], v3, s[20:23], s27 offen')
    a('s_add_u32 s26, s26, 4096')
    a('s_add_u32 s27, s27, 5120')

def q_loop(a, KS, nKS, abase, bbase):
    a(f's_mul_i32 s26, s24, {nKS}')
    a(f's_mul_i32 s30, s31, {KS}')
    a('s_add_u32 s26, s26, s30')
    a('s_lshl_b32 s26, s26, 12')
    a(f's_add_u32 s26, s26, {abase}')
    a(f's_mul_i32 s27, s25, {nKS}')
    a('s_add_u32 s27, s27, s30')
    a('s_mul_i32 s27, s27, 5120')
    a(f's_add_u32 s27, s27, {bbase}')
    for s in range(min(QD, KS)):
        q_loads(a, s)
    for i in range(80):
        a(f'v_accvgpr_write_b32 a{i}, 0')
    for s in range(KS):
        st = s % QD
        inflight = min(QD, KS - s)
        a(f's_waitcnt vmcnt({9 * (inflight - 1)})')
        if s == 0: stamp(a, 1)
        for fa in range(4):
            for fb in range(5):
                c = qacc(fa, fb); A = qfr(st, fa); B = qfr(st, 4 + fb)
                a(f'v_mfma_f32_16x16x32_bf16 a[{c}:{c+3}], v[{A}:{A+3}], v[{B}:{B+3}], a[{c}:{c+3}]')
        if s + QD < KS:
            q_loads(a, st)

def common_prologue(a, endlabel, nwg):
    a(f's_cmp_ge_u32 s2, {nwg}')
    a(f's_cbranch_scc1 {endlabel}')
    a(f's_load_dwordx2 s[6:7], s[0:1], {KA["ws"]}')
    a('v_lshrrev_b32 v2, 6, v0')
    a('v_and_b32 v1, 63, v0')
    a('v_readfirstlane_b32 s3, v2')
    a('s_waitcnt lgkmcnt(0)')
    srd(a, 20, 6, 7, WS_SIZE)
    stamp(a, 0)

def gen_k2(a):
    a.raw('.p2align 8')
    a.label('k2_kernel')
    common_prologue(a, 'K2_END', 160)
    a.label('K2_FIX')
    a('s_mov_b32 s24, s2')
    a('s_mov_b32 s30, 0x33333334')
    a('s_mul_hi_u32 s25, s24, s30')
    a('s_mul_i32 s30, s25, 5')
    a('s_sub_u32 s24, s24, s30')
    a(f's_load_dwordx4 s[36:39], s[0:1], {KA["lre"]}')
    a(f's_load_dwordx2 s[40:41], s[0:1], {KA["logdt"]}')
    a('v_lshrrev_b32 v2, 4, v0')
    a('v_and_b32 v3, 15, v0')
    a('s_lshl_b32 s30, s25, 4')
    a('v_add_u32 v4, s30, v2')
    a('s_movk_i32 s30, 1280')
    a('v_mul_lo_u32 v4, v4, s30')
    a('s_lshl_b32 s31, s24, 4')
    a('v_add_u32 v4, v3, v4')
    a('v_add_u32 v4, s31, v4')
    a('v_lshlrev_b32 v4, 4, v4')
    a(f'v_add_u32 v4, {SLOC}, v4')
    a('s_lshl_b32 s31, s24, 7')
    def sloc_loads():
        for part in range(2):
            for ch in range(8):
                off = part * 10240 + ch * 1280
                a(f's_movk_i32 s30, {off}')
                a(f'buffer_load_dwordx4 v[{128 + part * 32 + ch * 4}:{131 + part * 32 + ch * 4}], v4, s[20:23], s30 offen')
    a('s_cmp_lt_u32 s3, 2')
    a('s_cbranch_scc1 K2_FIX_P1')
    sloc_loads()
    a('s_branch K2_FIX_P2')
    a.label('K2_FIX_P1')
    a('v_add_u32 v5, s31, v0')
    a('v_lshlrev_b32 v6, 2, v5')
    a(f'v_add_u32 v6, {EEND}, v6')
    for c in range(31):
        a(f's_mov_b32 s30, {c * 5120}')
        a(f'buffer_load_dword v{64 + 2 * c}, v6, s[20:23], s30 offen')
        a(f'buffer_load_dword v{65 + 2 * c}, v6, s[20:23], s30 offen offset:2560')
    a('v_lshlrev_b32 v6, 1, v5')
    a('s_waitcnt lgkmcnt(0)')
    a('global_load_ushort v10, v6, s[36:37]')
    a('global_load_ushort v11, v6, s[38:39]')
    a('global_load_ushort v12, v6, s[40:41]')
    sloc_loads()
    a('s_waitcnt vmcnt(16)')
    lam_compute(a, 10, 11, 12, 13, 14, 15, 16)
    a('v_add_f32 v15, -1.0, v13')
    a('v_mul_f32 v16, v10, v10')
    a('v_fma_f32 v16, v11, v11, v16')
    a('v_rcp_f32 v16, v16')
    a('v_mul_f32 v17, v15, v10')
    a('v_fma_f32 v17, v14, v11, v17')
    a('v_mul_f32 v18, v14, v10')
    a('v_fma_f32 v18, -v15, v11, v18')
    a('v_add_f32 v16, v16, v16')
    a('v_mul_f32 v17, v17, v16')
    a('v_mul_f32 v18, v18, v16')
    def csq(dr, di, sr, si):
        a(f'v_mul_f32 v24, v{si}, v{si}')
        a(f'v_mul_f32 v25, v{sr}, v{si}')
        a(f'v_fma_f32 v{dr}, v{sr}, v{sr}, -v24')
        a(f'v_add_f32 v{di}, v25, v25')
    csq(19, 20, 13, 14)
    csq(21, 22, 19, 20)
    csq(19, 20, 21, 22)
    csq(19, 20, 19, 20)
    csq(19, 20, 19, 20)
    csq(19, 20, 19, 20)
    a('v_mov_b32 v26, 0')
    a('v_mov_b32 v27, 0')
    for c in range(31):
        a(f's_cmp_le_u32 s25, {c}')
        a('s_cbranch_scc1 K2_FIX_CARRY_DONE')
        a(f'v_fma_f32 v{64 + 2 * c}, -v20, v27, v{64 + 2 * c}')
        a(f'v_fma_f32 v{65 + 2 * c}, v20, v26, v{65 + 2 * c}')
        a(f'v_fma_f32 v28, v19, v26, v{64 + 2 * c}')
        a(f'v_fma_f32 v27, v19, v27, v{65 + 2 * c}')
        a('v_mov_b32 v26, v28')
    a.label('K2_FIX_CARRY_DONE')
    a('v_mul_f32 v28, v14, v27')
    a('v_mul_f32 v29, v14, v26')
    a('v_fma_f32 v30, v13, v26, -v28')
    a('v_fma_f32 v31, v13, v27, v29')
    a('v_lshlrev_b32 v6, 3, v0')
    for q in range(16):
        a(f'ds_write_b64 v6, v[30:31] offset:{q * 1024}')
        if q < 15:
            a('v_mul_f32 v28, v22, v31')
            a('v_mul_f32 v29, v22, v30')
            a('v_fma_f32 v32, v21, v30, -v28')
            a('v_fma_f32 v31, v21, v31, v29')
            a('v_mov_b32 v30, v32')
    a('v_mov_b32 v32, v13')
    a('v_mov_b32 v33, v14')
    a('v_mov_b32 v34, v17')
    a('v_mov_b32 v35, v18')
    a('v_lshlrev_b32 v6, 4, v0')
    a('ds_write_b128 v6, v[32:35] offset:16384')
    a.label('K2_FIX_P2')
    a('s_waitcnt lgkmcnt(0)')
    stamp(a, 1)
    a('s_barrier')
    a('v_lshlrev_b32 v5, 10, v2')
    a('v_lshl_add_u32 v5, v3, 6, v5')
    a('v_lshlrev_b32 v6, 7, v3')
    for i in range(4):
        a(f'ds_read_b128 v[{16 + 4 * i}:{19 + 4 * i}], v5 offset:{16 * i}')
    for ch in range(8):
        a(f'ds_read_b128 v[{32 + 4 * ch}:{35 + 4 * ch}], v6 offset:{16384 + 16 * ch}')
    a('s_mul_i32 s30, s25, 40')
    a('s_lshl_b32 s31, s24, 2')
    a('s_add_u32 s30, s30, s31')
    a('v_lshrrev_b32 v7, 2, v3')
    a('v_add_u32 v7, s30, v7')
    a('v_lshrrev_b32 v8, 2, v2')
    a('v_lshl_add_u32 v7, v7, 2, v8')
    a('v_lshlrev_b32 v7, 10, v7')
    a('v_and_b32 v8, 3, v2')
    a('v_lshl_add_u32 v7, v8, 6, v7')
    a('v_and_b32 v8, 3, v3')
    a('v_lshl_add_u32 v7, v8, 8, v7')
    a(f'v_add_u32 v7, {HF}, v7')
    a('s_mov_b32 s30, 81920')
    a('s_waitcnt vmcnt(0) lgkmcnt(0)')
    stamp(a, 2)
    for ch in range(8):
        gr = 16 + 2 * ch; gi = gr + 1
        lr = 32 + 4 * ch; li = lr + 1; cr = lr + 2; ci = lr + 3
        for j in range(4):
            sr = 128 + ch * 4 + j; si = 160 + ch * 4 + j
            a(f'v_add_f32 v{sr}, v{sr}, v{gr}')
            a(f'v_add_f32 v{si}, v{si}, v{gi}')
            a(f'v_mul_f32 v8, v{ci}, v{si}')
            a(f'v_mul_f32 v9, v{ci}, v{sr}')
            a(f'v_fma_f32 v{64 + j * 8 + ch}, v{cr}, v{sr}, -v8')
            a(f'v_fma_f32 v{96 + j * 8 + ch}, -v{cr}, v{si}, -v9')
            if j < 3:
                a(f'v_mul_f32 v8, v{li}, v{gi}')
                a(f'v_mul_f32 v9, v{li}, v{gr}')
                a(f'v_fma_f32 v10, v{lr}, v{gr}, -v8')
                a(f'v_fma_f32 v{gi}, v{lr}, v{gi}, v9')
                a(f'v_mov_b32 v{gr}, v10')
    for j in range(4):
        for part in range(2):
            b0 = (64 if part == 0 else 96) + j * 8
            o = 128 + (j * 2 + part) * 4
            for i in range(4):
                a(f'v_cvt_pk_bf16_f32 v{o + i}, v{b0 + 2 * i}, v{b0 + 2 * i + 1}')
            so = '0' if part == 0 else 's30'
            a(f'buffer_store_dwordx4 v[{o}:{o+3}], v7, s[20:23], {so} offen offset:{j * 16}')
    stamp_flush(a, 1, 3)
    a.label('K2_END')
    a('s_endpgm')

def gen_k3(a):
    a.raw('.p2align 8')
    a.label('k3_kernel')
    a('s_cmp_ge_u32 s2, 256')
    a('s_cbranch_scc1 K3_END')
    a(f's_load_dwordx2 s[6:7], s[0:1], {KA["ws"]}')
    a(f's_load_dwordx2 s[4:5], s[0:1], {KA["x"]}')
    a(f's_load_dwordx2 s[32:33], s[0:1], {KA["dskip"]}')
    a(f's_load_dwordx2 s[34:35], s[0:1], {KA["out"]}')
    a('v_lshrrev_b32 v2, 6, v0')
    a('v_and_b32 v1, 63, v0')
    a('v_readfirstlane_b32 s3, v2')
    a('s_and_b32 s24, s2, 31')
    a('s_lshr_b32 s25, s2, 5')
    a('v_lshlrev_b32 v2, 4, v1')
    a('v_add_u32 v3, 4096, v2')
    a('s_lshl_b32 s30, s24, 6')
    a('s_lshl_b32 s31, s3, 4')
    a('s_add_u32 s30, s30, s31')
    a('v_lshrrev_b32 v5, 4, v1')
    a('v_lshlrev_b32 v5, 2, v5')
    a('v_add_u32 v5, s30, v5')
    a('v_lshlrev_b32 v6, 3, v5')
    a(f'v_add_u32 v6, {GATE}, v6')
    a('s_mul_i32 s30, s25, 80')
    a('v_and_b32 v8, 15, v1')
    a('v_add_u32 v8, s30, v8')
    a('v_lshlrev_b32 v9, 1, v8')
    a('s_movk_i32 s30, 1280')
    a('v_mul_lo_u32 v10, v5, s30')
    a('v_add_u32 v10, v10, v9')
    a('v_lshlrev_b32 v11, 1, v10')
    a('s_waitcnt lgkmcnt(0)')
    srd(a, 20, 6, 7, WS_SIZE)
    srd(a, 8, 4, 5, 2621440)
    srd(a, 12, 34, 35, 5242880)
    stamp(a, 0)
    G0 = 196
    a(f'buffer_load_dwordx4 v[{G0}:{G0+3}], v6, s[20:23], 0 offen')
    a(f'buffer_load_dwordx4 v[{G0+4}:{G0+7}], v6, s[20:23], 0 offen offset:16')
    for fb in range(5):
        a(f'global_load_ushort v{204 + fb}, v9, s[32:33] offset:{32 * fb}')
    for r in range(4):
        a(f's_mov_b32 s30, {r * 1280}')
        for fb in range(5):
            a(f'buffer_load_ushort v{210 + fb * 4 + r}, v10, s[8:11], s30 offen offset:{32 * fb}')
    a('s_and_b32 s31, s3, 1')
    a('s_cmp_ge_u32 s3, 2')
    a('s_cbranch_scc1 K3_H')
    q_loop(a, 24, 48, ACTF, W2F)
    a('s_branch K3_RED')
    a.label('K3_H')
    q_loop(a, 20, 40, HF, CF)
    a.label('K3_RED')
    stamp(a, 2)
    a('s_nop 7')
    a('s_mul_i32 s30, s3, 20480')
    a('v_add_u32 v4, s30, v2')
    for t in range(20):
        a(f'ds_write_b128 v4, a[{t * 4}:{t * 4 + 3}] offset:{t * 1024}')
    for fb in range(5):
        a(f'v_lshlrev_b32 v{204 + fb}, 16, v{204 + fb}')
        for r in range(4):
            x = 210 + fb * 4 + r
            a(f'v_lshlrev_b32 v{x}, 16, v{x}')
            a(f'v_mul_f32 v{x}, v{x}, v{204 + fb}')
        round_bf16_pair(a, 210 + fb * 4, 211 + fb * 4, 12)
        round_bf16_pair(a, 212 + fb * 4, 213 + fb * 4, 12)
    a('s_waitcnt lgkmcnt(0)')
    a('s_barrier')
    a('s_mul_i32 s30, s3, 5120')
    a('v_add_u32 v4, s30, v2')
    a('v_add_u32 v7, 40960, v4')
    for u in range(4):
        for fb in range(5):
            r = 16 + (u * 5 + fb) * 4
            a(f'ds_read_b128 v[{r}:{r+3}], v{4 if u < 2 else 7} offset:{(u & 1) * 20480 + fb * 1024}')
    a('s_waitcnt lgkmcnt(0)')
    for fb in range(5):
        for r in range(4):
            d = 16 + fb * 4 + r
            a(f'v_add_f32 v{d}, v{d}, v{d + 20}')
            a(f'v_add_f32 v{d + 40}, v{d + 40}, v{d + 60}')
        d = 16 + fb * 4
        round_bf16_pair(a, d, d + 1, 12)
        round_bf16_pair(a, d + 2, d + 3, 12)
        for r in range(4):
            a(f'v_mul_f32 v{d + r}, v{d + r}, v{G0 + 1 + 2 * r}')
        round_bf16_pair(a, d, d + 1, 12)
        round_bf16_pair(a, d + 2, d + 3, 12)
        for r in range(4):
            y = d + 40 + r; x = 210 + fb * 4 + r
            a(f'v_add_f32 v{y}, v{y}, v{x}')
            a(f'v_mul_f32 v{y}, v{G0 + 2 * r}, v{y}')
            a(f'v_add_f32 v{y}, v{y}, v{d + r}')
    for r in range(4):
        a(f's_mov_b32 s30, {r * 2560}')
        for fb in range(5):
            a(f'buffer_store_dword v{56 + fb * 4 + r}, v11, s[12:15], s30 offen offset:{64 * fb}')
    stamp_flush(a, 2, 3)
    a.label('K3_END')
    a('s_endpgm')

def desc(name, vgpr=256):
    return f'''.p2align 6
.amdhsa_kernel {name}
  .amdhsa_next_free_vgpr {vgpr}
  .amdhsa_next_free_sgpr 102
  .amdhsa_accum_offset 256
  .amdhsa_group_segment_fixed_size 0
  .amdhsa_kernarg_size 136
  .amdhsa_user_sgpr_count 2
  .amdhsa_user_sgpr_kernarg_segment_ptr 1
  .amdhsa_system_sgpr_workgroup_id_x 1
  .amdhsa_float_denorm_mode_32 3
.end_amdhsa_kernel
'''

def main(out):
    hdr = open(f'cdna_kernels/{NAME}.s.ref').read().split('; Override launch')[0]
    a.raw(hdr.rstrip('\n'))
    a.raw(f'; @launch kernel=k1_kernel grid=(256,1,1) block=(512,1,1) lds={K1_LDS}')
    a.raw('; @launch kernel=k3_kernel grid=(256,1,1) block=(256,1,1) lds=81920')
    a.raw('.amdgcn_target "amdgcn-amd-amdhsa--gfx950"')
    a.raw('.text')
    for k in ('k1_kernel', 'k3_kernel'):
        a.raw(f'.globl {k}')
        a.raw(f'.type {k},@function')
    gen_k1(a); gen_k3(a)
    a.raw('.section .rodata,"a"')
    a.raw(desc('k1_kernel')); a.raw(desc('k3_kernel', 336))
    t = a.text()
    open(out, 'w').write(t)
    w = lint(t)
    for x in w[:40]: print('HAZARD', x)
    print('lines', len(t.split('\n')), 'bytes', len(t), 'hazards', len(w))

if __name__ == '__main__':
    main(sys.argv[1] if len(sys.argv) > 1 else f'cdna_kernels/{NAME}.s')
```

```python
import sys, struct
from asmlib import Asm, lint

NAME = 'gated_mix__ssm_conv_s5__dense_activation_mish__prompt'
def f2h(x): return '0x%08x' % struct.unpack('<I', struct.pack('<f', x))[0]

ACTF = 0x0000000
HF   = 0x0800000
W2F  = 0x1000000
CF   = 0x1200000
SLOC = 0x1400000
EEND = 0x2000000
GATE = 0x2100000
OB   = 0x2200000
WS_SIZE = 0x4000000

KA = dict(x=0, lre=8, lim=16, bre=24, bim=32, cre=40, cim=48, logdt=56, dskip=64, bx=72, w1=80, b1=88, w2=96, gw=104, out=112, dbg=120, ws=128)

LOG2E = f2h(1.4426950408889634)
LN2 = f2h(0.6931471805599453)
M2LOG2E = f2h(-2 * 1.4426950408889634)
INV2PI = f2h(0.15915494309189535)

a = Asm()
import os
DIAG = int(os.environ.get('DIAG', '0'))
EXP = int(os.environ.get('EXP', '0'))
PF = int(os.environ.get('PF', '0'))
STF = os.environ.get('STF', 'sc1')
K3MAP = int(os.environ.get('K3MAP', '0'))
PRIO = int(os.environ.get('PRIO', '0'))
STAMP = 0x3000000
SR = [98, 100, 82, 80]
STU = int(os.environ.get('STU', '0'))
def stamp(a, i):
    if not DIAG: return
    a(f's_memrealtime s[{SR[i]}:{SR[i] + 1}]')
    a('s_waitcnt lgkmcnt(0)')
def stamp_flush(a, kid, n, role=0):
    if not DIAG: return
    a('s_waitcnt vmcnt(0) lgkmcnt(0)')
    a(f's_memrealtime s[{SR[n]}:{SR[n] + 1}]')
    a('s_waitcnt lgkmcnt(0)')
    lab = a.newlabel('LST')
    a('s_cmp_lg_u32 s3, 0')
    a(f's_cbranch_scc1 {lab}')
    if DIAG == 2:
        if kid == 0:
            a('v_mov_b32 v2, 0')
            a('s_mov_b64 exec, 1')
            a(f's_not_b32 s30, s{SR[0]}')
            a('v_mov_b32 v3, s30')
            a('global_atomic_umax v2, v3, s[94:95] offset:28')
            if role < 2:
                for i in range(1, n + 1):
                    a(f'v_mov_b32 v3, s{SR[i]}')
                    a(f'global_atomic_umax v2, v3, s[94:95] offset:{32 + 12 * role + 4 * (i - 1)}')
    else:
        a('s_lshl_b32 s30, s2, 6')
        a(f's_add_u32 s30, s30, {STAMP + kid * 65536}')
        a('v_mov_b32 v2, 0')
        a('s_mov_b64 exec, 1')
        for i in range(n + 1):
            a(f'v_mov_b32 v3, s{SR[i]}')
            a(f'buffer_store_dword v3, v2, s[20:23], s30 offen offset:{4 * i}')
    a.label(lab)

def srd(a, s, lo, hi_reg, size):
    a(f's_mov_b32 s{s}, s{lo}')
    a(f's_and_b32 s{s+1}, s{hi_reg}, 0xffff')
    a(f's_mov_b32 s{s+2}, {size}')
    a(f's_mov_b32 s{s+3}, 0x00020000')

def round_bf16_pair(a, x0, x1, t):
    a(f'v_cvt_pk_bf16_f32 v{t}, v{x0}, v{x1}')
    a(f'v_lshlrev_b32 v{x0}, 16, v{t}')
    a(f'v_and_b32 v{x1}, 0xffff0000, v{t}')

def mish_consts(a):
    a(f's_mov_b32 s32, {LOG2E}')
    a(f's_mov_b32 s33, {LN2}')
    a(f's_mov_b32 s34, {M2LOG2E}')
    a(f's_mov_b32 s35, {f2h(2.0**-12)}')
    a(f's_mov_b32 s36, {f2h(2.0**-6)}')

def mish_pair(a, x0, x1, out, T, want_th=False):
    e0, e1, l0, l1, s0, s1, d0, d1 = T
    a(f'v_mul_f32 v{e0}, -abs(v{x0}), s32')
    a(f'v_mul_f32 v{e1}, -abs(v{x1}), s32')
    a(f'v_exp_f32 v{e0}, v{e0}')
    a(f'v_exp_f32 v{e1}, v{e1}')
    a(f'v_max_f32 v{s0}, 0, v{x0}')
    a(f'v_max_f32 v{s1}, 0, v{x1}')
    round_bf16_pair(a, e0, e1, d0)
    a(f'v_add_f32 v{l0}, 1.0, v{e0}')
    a(f'v_add_f32 v{l1}, 1.0, v{e1}')
    a(f'v_log_f32 v{l0}, v{l0}')
    a(f'v_log_f32 v{l1}, v{l1}')
    a(f'v_cmp_gt_f32 s[38:39], s35, v{e0}')
    a(f'v_cmp_gt_f32 s[40:41], s35, v{e1}')
    a(f'v_mul_f32 v{l0}, s33, v{l0}')
    a(f'v_mul_f32 v{l1}, s33, v{l1}')
    a(f'v_cndmask_b32 v{l0}, v{l0}, v{e0}, s[38:39]')
    a(f'v_cndmask_b32 v{l1}, v{l1}, v{e1}, s[40:41]')
    round_bf16_pair(a, l0, l1, d0)
    a(f'v_add_f32 v{s0}, v{s0}, v{l0}')
    a(f'v_add_f32 v{s1}, v{s1}, v{l1}')
    round_bf16_pair(a, s0, s1, d0)
    a(f'v_mul_f32 v{e0}, s34, v{s0}')
    a(f'v_mul_f32 v{e1}, s34, v{s1}')
    a(f'v_exp_f32 v{e0}, v{e0}')
    a(f'v_exp_f32 v{e1}, v{e1}')
    a(f'v_cmp_gt_f32 s[38:39], s36, v{s0}')
    a(f'v_cmp_gt_f32 s[40:41], s36, v{s1}')
    a(f'v_add_f32 v{d0}, 1.0, v{e0}')
    a(f'v_add_f32 v{d1}, 1.0, v{e1}')
    a(f'v_rcp_f32 v{d0}, v{d0}')
    a(f'v_rcp_f32 v{d1}, v{d1}')
    a(f'v_sub_f32 v{e0}, 1.0, v{e0}')
    a(f'v_sub_f32 v{e1}, 1.0, v{e1}')
    a(f'v_mul_f32 v{e0}, v{e0}, v{d0}')
    a(f'v_mul_f32 v{e1}, v{e1}, v{d1}')
    a(f'v_cndmask_b32 v{e0}, v{e0}, v{s0}, s[38:39]')
    a(f'v_cndmask_b32 v{e1}, v{e1}, v{s1}, s[40:41]')
    round_bf16_pair(a, e0, e1, d0)
    if want_th: return
    a(f'v_mul_f32 v{e0}, v{x0}, v{e0}')
    a(f'v_mul_f32 v{e1}, v{x1}, v{e1}')
    a(f'v_cvt_pk_bf16_f32 v{out}, v{e0}, v{e1}')

def lam_compute(a, vlre, vlim, vldt, lr, li, t0, t1):
    a(f's_mov_b32 s58, {LOG2E}')
    a(f's_mov_b32 s59, {INV2PI}')
    a(f'v_lshlrev_b32 v{vlre}, 16, v{vlre}')
    a(f'v_lshlrev_b32 v{vlim}, 16, v{vlim}')
    a(f'v_lshlrev_b32 v{vldt}, 16, v{vldt}')
    a(f'v_mul_f32 v{t0}, s58, v{vldt}')
    a(f'v_exp_f32 v{t0}, v{t0}')
    a(f's_nop 0')
    a(f'v_cvt_pk_bf16_f32 v{t0}, v{t0}, v{t0}')
    a(f'v_lshlrev_b32 v{vldt}, 16, v{t0}')
    a(f'v_mul_f32 v{t0}, v{vldt}, v{vlre}')
    a(f'v_mul_f32 v{t1}, v{vldt}, v{vlim}')
    a(f'v_mul_f32 v{t0}, s58, v{t0}')
    a(f'v_mul_f32 v{t1}, s59, v{t1}')
    a(f'v_exp_f32 v{t0}, v{t0}')
    a(f'v_fract_f32 v{t1}, v{t1}')
    a(f'v_cos_f32 v{lr}, v{t1}')
    a(f'v_sin_f32 v{li}, v{t1}')
    a(f's_nop 0')
    a(f'v_mul_f32 v{lr}, v{lr}, v{t0}')
    a(f'v_mul_f32 v{li}, v{li}, v{t0}')

LUTB = 0
XB = [16384, 32768, 49152]
WB = [65536, 98304, 131072]
K1_LDS = 163840
ACC = 128
def acc(mt, jt): return ACC + (mt * 2 + jt) * 16
FX = [24, 48]
FW = [40, 64]
LUT_LO2 = (117 << 7) << 1
LUT_N = 14 * 128 * 2
NS = 10

def k1_dma(a, s, mlp):
    b = s % 3
    rowstep = 8 if mlp else 4
    for ii in range(4):
        a(f's_add_u32 m0, s28, {XB[b] + ii * 1024}')
        a(f's_add_u32 s30, s26, {ii * rowstep * 1280 + 128 * s}')
        a(f'buffer_load_dwordx4 v{4 + (ii & 1)}, s[8:11], s30 offen lds')
    if mlp:
        for jj in range(8):
            a(f's_add_u32 m0, s29, {WB[b] + jj * 1024}')
            a(f's_add_u32 s30, s27, {(64 * s + 2 * jj) * 3072}')
            a(f'buffer_load_dwordx4 v{6 + (jj & 1)}, s[12:15], s30 offen lds')
    else:
        for jj in range(4):
            a(f's_add_u32 m0, s28, {WB[b] + jj * 1024}')
            a(f's_add_u32 s30, s27, {jj * 8 * 1280 + 128 * s}')
            a(f'buffer_load_dwordx4 v{6 + (jj & 1)}, s[12:15], s30 offen lds')

def k1_reads(a, s, ks, st, mlp):
    b = s % 3
    n = 0
    for mt in range(4 if mlp else 2):
        r = FX[st] + mt * 4
        a(f'ds_read_b128 v[{r}:{r+3}], v{8 + ks} offset:{XB[b] + mt * 4096}'); n += 1
    for jt in range(2):
        r = FW[st] + jt * 4
        if mlp:
            base = 12 + jt if b < 2 else 16 + jt
            off = (b if b < 2 else 0) * 32768 + ks * 8192
            a(f'ds_read_b64_tr_b16 v[{r}:{r+1}], v{base} offset:{off}'); n += 1
            a(f'ds_read_b64_tr_b16 v[{r+2}:{r+3}], v{base} offset:{off + 2048}'); n += 1
        else:
            base = 12 + ks if b < 2 else 16 + ks
            off = (b if b < 2 else 0) * 32768 + jt * 4096
            a(f'ds_read_b128 v[{r}:{r+3}], v{base} offset:{off}'); n += 1
    return n

def k1_mfma(a, st, mlp):
    for mt in range(4 if mlp else 2):
        for jt in range(2):
            x = FX[st] + mt * 4; w = FW[st] + jt * 4; c = acc(mt, jt)
            if mlp:
                a(f'v_mfma_f32_32x32x16_bf16 v[{c}:{c+15}], v[{w}:{w+3}], v[{x}:{x+3}], v[{c}:{c+15}]')
            else:
                a(f'v_mfma_f32_32x32x16_bf16 v[{c}:{c+15}], v[{x}:{x+3}], v[{w}:{w+3}], v[{c}:{c+15}]')

def k1_mainloop(a, mlp):
    if PRIO: a(f's_setprio {PRIO}')
    for s in range(NS):
        a('s_barrier')
        if s == 0: stamp(a, 1)
        if s == 0 and not mlp:
            a('s_cmp_lg_u32 s3, 0')
            a('s_cbranch_scc1 K1_U_NOAT')
            a('s_mov_b64 s[56:57], exec')
            a('s_mov_b64 exec, 1')
            a('global_atomic_or v82, v83, s[94:95]')
            a('s_mov_b64 exec, s[56:57]')
            a.label('K1_U_NOAT')
        n = k1_reads(a, s, 0, 0, mlp)
        for ks in range(4):
            st = ks & 1
            if ks < 3:
                n2 = k1_reads(a, s, ks + 1, st ^ 1, mlp)
                a(f's_waitcnt lgkmcnt({n2})')
            else:
                a('s_waitcnt lgkmcnt(0)')
            k1_mfma(a, st, mlp)

def k1_loader(a, mlp):
    nd = 12 if mlp else 8
    k1_dma(a, 0, mlp)
    k1_dma(a, 1, mlp)
    for s in range(NS):
        a(f's_waitcnt vmcnt({nd if s < NS - 1 else 0})')
        a('s_barrier')
        if s + 2 < NS:
            k1_dma(a, s + 2, mlp)

def mlp_bias_loads(a):
    a('s_lshl_b32 s42, s25, 8')
    a('s_lshl_b32 s30, s3, 6')
    a('s_add_u32 s42, s42, s30')
    a('v_lshlrev_b32 v74, 4, v72')
    a('s_lshl_b32 s30, s42, 1')
    a('v_add_u32 v74, s30, v74')
    for jt in range(2):
        for ap in range(2):
            r = 96 + (jt * 2 + ap) * 4
            a(f'global_load_dwordx4 v[{r}:{r+3}], v74, s[86:87] offset:{(32 * jt + 16 * ap) * 2}')

def mlp_epilogue(a, mts, tag):
    T = list(range(56, 64))
    for jt in range(2):
        for ap in range(2):
            for i in range(4):
                src = 96 + (jt * 2 + ap) * 4 + i
                d = 24 + jt * 16 + ap * 8 + i * 2
                a(f'v_lshlrev_b32 v{d}, 16, v{src}')
                a(f'v_and_b32 v{d+1}, 0xffff0000, v{src}')
    a('v_bfe_u32 v74, v1, 4, 1')
    a('v_lshlrev_b32 v74, 10, v74')
    a('v_and_b32 v75, 15, v1')
    a('v_lshl_add_u32 v74, v75, 4, v74')
    a('v_lshl_add_u32 v74, v72, 8, v74')
    a('s_mul_i32 s31, s24, 393216')
    a('s_lshl_b32 s30, s42, 7')
    a('s_add_u32 s31, s31, s30')
    if ACTF: a(f's_add_u32 s31, s31, {ACTF}')
    a(f's_mov_b32 s37, {LUT_LO2 | (LUT_LO2 << 16)}')
    a('v_mov_b32 v75, 0')
    groups = [(mt, jt, ap) for mt in mts for jt in range(2) for ap in range(2)]
    def stage_a(g, k):
        mt, jt, ap = g
        for i in range(4):
            c0 = acc(mt, jt) + ap * 8 + i * 2
            b0 = 24 + jt * 16 + ap * 8 + i * 2
            t = 112 + 2 * i
            a(f'v_cvt_pk_bf16_f32 v{t}, v{c0}, v{c0+1}')
            a(f'v_lshlrev_b32 v{c0}, 16, v{t}')
            a(f'v_and_b32 v{c0+1}, 0xffff0000, v{t}')
            a(f'v_pk_add_f32 v[{c0}:{c0+1}], v[{c0}:{c0+1}], v[{b0}:{b0+1}]')
            a(f'v_cvt_pk_bf16_f32 v{t}, v{c0}, v{c0+1}')
            a(f'v_lshlrev_b32 v{c0}, 16, v{t}')
            a(f'v_and_b32 v{c0+1}, 0xffff0000, v{t}')
            a(f'v_pk_lshlrev_b16 v{t+1}, 1, v{t} op_sel_hi:[0,1]')
            a(f'v_pk_lshrrev_b16 v{t}, 15, v{t} op_sel_hi:[0,1]')
            a(f'v_or_b32 v{t}, v{t}, v{t+1}')
            a(f'v_pk_sub_u16 v{t}, v{t}, s37 clamp')
            a(f'v_pk_max_u16 v75, v75, v{t}')
            a(f'v_lshlrev_b32_sdwa v{t+1}, 2, v{t} dst_sel:DWORD dst_unused:UNUSED_PAD src0_sel:DWORD src1_sel:WORD_1')
            a(f'v_lshlrev_b32_sdwa v{t}, 2, v{t} dst_sel:DWORD dst_unused:UNUSED_PAD src0_sel:DWORD src1_sel:WORD_0')
            a(f'ds_read_b32 v{96 + 8 * k + 2 * i}, v{t} offset:{LUTB}')
            a(f'ds_read_b32 v{97 + 8 * k + 2 * i}, v{t+1} offset:{LUTB}')
    def store_g(g, outr):
        mt, jt, ap = g
        off = (mt >> 1) * 196608 + jt * 4096 + 2 * (mt & 1) * 1024 + ap * 512
        a(f's_add_u32 s30, s31, {off}')
        a(f'buffer_store_dwordx4 v[{outr}:{outr+3}], v74, s[20:23], s30 offen {STF}')
    def stage_b(g, k):
        mt, jt, ap = g
        outr = 64 + 4 * k
        for i in range(4):
            c0 = acc(mt, jt) + ap * 8 + i * 2
            th = 96 + 8 * k + 2 * i
            a(f'v_pk_mul_f32 v[{th}:{th+1}], v[{th}:{th+1}], v[{c0}:{c0+1}]')
            a(f'v_cvt_pk_bf16_f32 v{outr + i}, v{th}, v{th+1}')
        store_g(g, outr)
    ng = len(groups)
    stage_a(groups[0], 0)
    for gi in range(ng):
        k = gi & 1
        if gi + 1 < ng:
            stage_a(groups[gi + 1], k ^ 1)
            a('s_waitcnt lgkmcnt(8)')
        else:
            a('s_waitcnt lgkmcnt(0)')
        stage_b(groups[gi], k)
    a(f's_mov_b32 s30, {(LUT_N - 1) | ((LUT_N - 1) << 16)}')
    a('v_pk_sub_u16 v76, v75, s30 clamp')
    a('v_cmp_ne_u32 vcc, 0, v76')
    a(f's_cbranch_vccz K1_MLP_DONE{tag}')
    a('s_waitcnt vmcnt(0)')
    for gi, g in enumerate(groups):
        mt, jt, ap = g
        outr = 64 + 4 * (gi & 1)
        for i in range(4):
            c0 = acc(mt, jt) + ap * 8 + i * 2
            mish_pair(a, c0, c0 + 1, outr + i, T)
        store_g(g, outr)
    a.label(f'K1_MLP_DONE{tag}')

def side_jobs(a):
    a('v_lshlrev_b32 v2, 2, v1')
    a('v_and_b32 v3, 15, v1')
    a('v_lshrrev_b32 v6, 4, v1')
    a('s_movk_i32 s30, 10240')
    a('v_mul_lo_u32 v4, v6, s30')
    a('v_lshl_add_u32 v4, v3, 1, v4')
    a('v_lshlrev_b32 v5, 4, v1')
    a('s_movk_i32 s30, 1280')
    a('v_mul_lo_u32 v7, v3, s30')
    a('v_lshl_add_u32 v7, v6, 4, v7')
    srd(a, 12, 88, 89, 1966080)
    srd(a, 16, 74, 75, 819200)
    srd(a, 48, 76, 77, 819200)
    for j in range(5):
        a(f'global_load_dword v{10 + j}, v2, s[90:91] offset:{256 * j}')
    for i in range(4):
        a(f's_add_u32 s30, s24, {640 * i}')
        a('s_mul_i32 s30, s30, 1280')
        for j in range(5):
            a(f'buffer_load_dword v{16 + 5 * i + j}, v2, s[8:11], s30 offen offset:{256 * j}')
    for i in range(3):
        a(f's_add_u32 s25, s24, {640 * i}')
        a('s_mov_b32 s30, 0x01111112')
        a('s_mul_hi_u32 s40, s25, s30')
        a('s_mul_i32 s41, s40, 240')
        a('s_sub_u32 s41, s25, s41')
        a('s_mov_b32 s30, 0x33333334')
        a('s_mul_hi_u32 s42, s41, s30')
        a('s_mul_i32 s43, s42, 5')
        a('s_sub_u32 s43, s41, s43')
        a('s_mul_i32 s40, s40, 160')
        a('s_lshl_b32 s43, s43, 5')
        a('s_mul_i32 s42, s42, 40960')
        a('s_add_u32 s30, s40, s43')
        a('s_add_u32 s30, s30, s42')
        for k in range(8):
            if k: a('s_add_u32 s30, s30, 1280')
            a(f'buffer_load_ushort v{40 + 8 * i + k}, v4, s[12:15], s30 offen')
    for i in range(3):
        lab = a.newlabel('K1_CF')
        a(f's_add_u32 s25, s24, {640 * i}')
        a('s_mov_b32 s30, 0x0147ae15')
        a('s_mul_hi_u32 s40, s25, s30')
        a('s_mul_i32 s41, s40, 200')
        a('s_sub_u32 s41, s25, s41')
        a('s_mov_b32 s30, 0x33333334')
        a('s_mul_hi_u32 s42, s41, s30')
        a('s_mul_i32 s43, s42, 5')
        a('s_sub_u32 s43, s41, s43')
        a('s_mul_i32 s40, s40, 102400')
        a('s_mul_i32 s43, s43, 20480')
        a('s_add_u32 s30, s40, s43')
        a('s_cmp_ge_u32 s42, 20')
        a(f's_cbranch_scc1 {lab}_im')
        a('s_lshl_b32 s42, s42, 6')
        a('s_add_u32 s30, s30, s42')
        a(f'buffer_load_dwordx4 v[{64 + 4 * i}:{67 + 4 * i}], v7, s[16:19], s30 offen')
        a(f's_branch {lab}_done')
        a.label(f'{lab}_im')
        a('s_sub_u32 s42, s42, 20')
        a('s_lshl_b32 s42, s42, 6')
        a('s_add_u32 s30, s30, s42')
        a(f'buffer_load_dwordx4 v[{64 + 4 * i}:{67 + 4 * i}], v7, s[48:51], s30 offen')
        a.label(f'{lab}_done')
    a('s_barrier')
    a('s_waitcnt vmcnt(0)')
    for i in range(3):
        for k in range(4):
            a(f'v_lshl_or_b32 v{80 + 4 * i + k}, v{41 + 8 * i + 2 * k}, 16, v{40 + 8 * i + 2 * k}')
        a(f's_add_u32 s30, s24, {640 * i}')
        a('s_lshl_b32 s30, s30, 10')
        a(f's_add_u32 s30, s30, {W2F}')
        a(f'buffer_store_dwordx4 v[{80 + 4 * i}:{83 + 4 * i}], v5, s[20:23], s30 offen {STF}')
    for i in range(3):
        lab = a.newlabel('K1_CFS')
        a(f's_add_u32 s30, s24, {640 * i}')
        if i == 2:
            a('s_cmp_ge_u32 s30, 1600')
            a(f's_cbranch_scc1 {lab}')
        a('s_lshl_b32 s30, s30, 10')
        a(f's_add_u32 s30, s30, {CF}')
        a(f'buffer_store_dwordx4 v[{64 + 4 * i}:{67 + 4 * i}], v5, s[20:23], s30 offen {STF}')
        a.label(lab)
    for j in range(5):
        a(f'v_lshlrev_b32 v{100 + 2 * j}, 16, v{10 + j}')
        a(f'v_and_b32 v{101 + 2 * j}, 0xffff0000, v{10 + j}')
    a(f's_mov_b32 s60, {f2h(-1.4426950408889634)}')
    for i in range(4):
        lab = a.newlabel('K1_G')
        a(f's_add_u32 s25, s24, {640 * i}')
        if i == 3:
            a('s_cmp_ge_u32 s25, 2048')
            a(f's_cbranch_scc1 {lab}')
        a('v_mov_b32 v120, 0')
        for j in range(5):
            a(f'v_lshlrev_b32 v110, 16, v{16 + 5 * i + j}')
            a(f'v_and_b32 v111, 0xffff0000, v{16 + 5 * i + j}')
            a(f'v_mul_f32 v110, v110, v{100 + 2 * j}')
            a(f'v_mul_f32 v111, v111, v{101 + 2 * j}')
            round_bf16_pair(a, 110, 111, 112)
            a('v_add_f32 v120, v120, v110')
            a('v_add_f32 v120, v120, v111')
        for sh in (1, 2, 4, 8):
            a('s_nop 1')
            a(f'v_add_f32_dpp v120, v120, v120 row_shr:{sh} row_mask:0xf bank_mask:0xf')
        a('s_nop 1')
        a('v_readlane_b32 s40, v120, 15')
        a('v_readlane_b32 s41, v120, 31')
        a('v_readlane_b32 s42, v120, 47')
        a('v_readlane_b32 s43, v120, 63')
        a('s_nop 1')
        a('v_mov_b32 v121, s40')
        a('v_add_f32 v121, s41, v121')
        a('v_add_f32 v121, s42, v121')
        a('v_add_f32 v121, s43, v121')
        a('v_cvt_pk_bf16_f32 v121, v121, v121')
        a('v_lshlrev_b32 v121, 16, v121')
        a('v_mul_f32 v122, s60, v121')
        a('v_exp_f32 v122, v122')
        a('s_nop 0')
        a('v_add_f32 v122, 1.0, v122')
        a('v_rcp_f32 v122, v122')
        a('s_nop 0')
        a('v_cvt_pk_bf16_f32 v122, v122, v122')
        a('v_lshlrev_b32 v122, 16, v122')
        a('v_sub_f32 v123, 1.0, v122')
        a('v_cvt_pk_bf16_f32 v123, v123, v123')
        a('v_lshlrev_b32 v123, 16, v123')
        a('s_lshl_b32 s30, s25, 3')
        a(f's_add_u32 s30, s30, {GATE}')
        a('v_mov_b32 v124, 0')
        a('s_mov_b64 s[40:41], exec')
        a('s_mov_b64 exec, 1')
        a(f'buffer_store_dwordx2 v[122:123], v124, s[20:23], s30 offen {STF}')
        a('s_mov_b64 exec, s[40:41]')
        a.label(lab)

def gen_k1(a):
    a.raw('.p2align 8')
    a.label('k1_kernel')
    a('s_cmp_ge_u32 s2, 256')
    a('s_cbranch_scc1 K1_END')
    a('s_load_dwordx16 s[64:79], s[0:1], 0')
    a('s_load_dwordx16 s[80:95], s[0:1], 64')
    a('s_load_dwordx2 s[96:97], s[0:1], 128')
    a('v_lshrrev_b32 v2, 6, v0')
    a('v_and_b32 v1, 63, v0')
    a('v_readfirstlane_b32 s52, v2')
    a('s_and_b32 s3, s52, 3')
    a('s_and_b32 s44, s2, 3')
    a('s_lshl_b32 s44, s44, 2')
    a('s_bfe_u32 s46, s2, 0x10002')
    a('s_lshr_b32 s45, s2, 3')
    a('s_and_b32 s43, s45, 3')
    a('s_add_u32 s24, s44, s43')
    a('s_lshr_b32 s43, s45, 2')
    a('s_lshl_b32 s28, s3, 12')
    a('s_lshl_b32 s29, s3, 13')
    a('v_lshrrev_b32 v72, 5, v1')
    a('s_waitcnt lgkmcnt(0)')
    srd(a, 8, 64, 65, 2621440)
    srd(a, 20, 96, 97, WS_SIZE)
    stamp(a, 0)
    a('s_cmp_ge_u32 s43, 5')
    a('s_cbranch_scc1 K1_ISMLP')
    a('s_mul_i32 s25, s46, 5')
    a('s_add_u32 s25, s25, s43')
    a('s_cmp_lt_u32 s52, 4')
    a('s_cbranch_scc1 K1_U')
    a('v_lshrrev_b32 v2, 3, v1')
    a('v_lshrrev_b32 v3, 4, v1')
    a('v_and_b32 v20, 7, v1')
    a('v_xor_b32 v21, v20, v3')
    a('v_xor_b32 v22, 4, v21')
    a('v_lshlrev_b32 v21, 4, v21')
    a('v_lshlrev_b32 v22, 4, v22')
    a('v_and_b32 v74, 3, v2')
    a('v_lshl_add_u32 v74, v72, 5, v74')
    a('s_movk_i32 s30, 1280')
    a('v_mul_lo_u32 v74, v74, s30')
    a('v_add_u32 v4, v74, v21')
    a('v_add_u32 v5, v74, v22')
    a('v_mul_lo_u32 v74, v2, s30')
    a('v_add_u32 v6, v74, v21')
    a('v_add_u32 v7, v74, v22')
    a('s_lshl_b32 s26, s24, 7')
    a('s_lshr_b32 s30, s3, 1')
    a('s_lshl_b32 s30, s30, 6')
    a('s_add_u32 s26, s26, s30')
    a('s_and_b32 s30, s3, 1')
    a('s_lshl_b32 s31, s30, 4')
    a('s_add_u32 s26, s26, s31')
    a('s_mul_i32 s26, s26, 1280')
    a('s_lshl_b32 s27, s25, 6')
    a('s_lshr_b32 s31, s3, 1')
    a('s_lshl_b32 s31, s31, 5')
    a('s_add_u32 s27, s27, s31')
    a('s_mul_i32 s27, s27, 1280')
    a('s_cmp_eq_u32 s30, 0')
    a('s_cselect_b32 s12, s70, s72')
    a('s_cselect_b32 s13, s71, s73')
    a('s_and_b32 s13, s13, 0xffff')
    a('s_mov_b32 s14, 819200')
    a('s_mov_b32 s15, 0x00020000')
    k1_loader(a, False)
    a('s_mul_i32 s24, s24, 10')
    a('s_add_u32 s24, s24, s25')
    a('s_lshl_b32 s24, s24, 2')
    a('s_add_u32 s24, s24, s3')
    side_jobs(a)
    a('s_endpgm')

    a.label('K1_U')
    a('v_and_b32 v23, 31, v1')
    a('v_lshlrev_b32 v23, 7, v23')
    a('v_bfe_u32 v73, v1, 1, 3')
    a('s_lshr_b32 s47, s3, 1')
    a('s_and_b32 s46, s3, 1')
    a('s_lshl_b32 s30, s47, 13')
    a('s_lshl_b32 s31, s46, 13')
    a(f's_add_u32 s31, s31, {WB[0]}')
    for ks in range(4):
        a(f'v_add_u32 v74, {2 * ks}, v72')
        a('v_xor_b32 v74, v74, v73')
        a(f'v_lshl_add_u32 v74, v74, 4, v23')
        a(f'v_add_u32 v{8 + ks}, s30, v74')
        a(f'v_add_u32 v{12 + ks}, s31, v74')
        a(f'v_add_u32 v{16 + ks}, 0x10000, v{12 + ks}')
    a('s_lshl_b32 s42, s25, 6')
    a('s_lshl_b32 s30, s46, 5')
    a('s_add_u32 s42, s42, s30')
    a('v_and_b32 v75, 31, v1')
    a('v_add_u32 v75, s42, v75')
    a('v_lshlrev_b32 v76, 1, v75')
    a('global_load_ushort v77, v76, s[66:67]')
    a('global_load_ushort v78, v76, s[68:69]')
    a('global_load_ushort v79, v76, s[78:79]')
    a('v_lshlrev_b32 v83, 3, v75')
    a(f'v_add_u32 v83, {EEND}, v83')
    a('s_mul_i32 s31, s24, 5120')
    a('v_mov_b32 v48, -1')
    a('v_mov_b32 v49, -1')
    a('s_cmp_lg_u32 s47, 0')
    a('s_cbranch_scc1 K1_U_NOCLR')
    a('buffer_store_dwordx2 v[48:49], v83, s[20:23], s31 offen sc1')
    a.label('K1_U_NOCLR')
    for i in range(64):
        a(f'v_mov_b32 v{ACC + i}, 0')
    a('s_waitcnt vmcnt(0)')
    lam_compute(a, 77, 78, 79, 80, 81, 82, 83)
    a('v_add_f32 v48, -1.0, v80')
    a('v_mul_f32 v49, v77, v77')
    a('v_fma_f32 v49, v78, v78, v49')
    a('v_rcp_f32 v49, v49')
    a('v_mul_f32 v84, v48, v77')
    a('v_fma_f32 v84, v81, v78, v84')
    a('v_mul_f32 v85, v81, v77')
    a('v_fma_f32 v85, -v48, v78, v85')
    a('v_add_f32 v49, v49, v49')
    a('v_mul_f32 v84, v84, v49')
    a('v_mul_f32 v85, v85, v49')
    def csq(dr, di, sr, si):
        a(f'v_mul_f32 v48, v{si}, v{si}')
        a(f'v_mul_f32 v49, v{sr}, v{si}')
        a(f'v_fma_f32 v{dr}, v{sr}, v{sr}, -v48')
        a(f'v_add_f32 v{di}, v49, v49')
    csq(86, 87, 80, 81)
    for _ in range(4): csq(86, 87, 86, 87)
    csq(88, 89, 86, 87)
    csq(88, 89, 88, 89)
    a('s_lshl_b32 s53, 1, s24')
    a('s_sub_u32 s54, s53, 1')
    a('s_lshl_b32 s30, s25, 2')
    a('v_mov_b32 v82, s30')
    a('v_mov_b32 v83, s53')
    k1_mainloop(a, False)
    stamp(a, 0 if STU else 2)
    a('global_load_dword v83, v82, s[94:95] sc1')
    a('s_nop 15')
    def rr(j): return acc(j >> 4, 0) + (j & 15)
    def ri(j): return acc(j >> 4, 1) + (j & 15)
    for j in range(1, 32):
        a(f'v_fma_f32 v{rr(j)}, -v81, v{ri(j-1)}, v{rr(j)}')
        a(f'v_fma_f32 v{ri(j)}, v81, v{rr(j-1)}, v{ri(j)}')
        a(f'v_fma_f32 v{rr(j)}, v80, v{rr(j-1)}, v{rr(j)}')
        a(f'v_fma_f32 v{ri(j)}, v80, v{ri(j-1)}, v{ri(j)}')
    a('v_and_b32 v56, 31, v1')
    a('s_lshl_b32 s30, s46, 5')
    a('v_add_u32 v56, s30, v56')
    a('v_lshlrev_b32 v56, 3, v56')
    a('v_lshl_add_u32 v57, v72, 9, v56')
    a('s_lshl_b32 s30, s47, 10')
    a('v_add_u32 v57, s30, v57')
    a(f'v_mov_b32 v48, v{rr(31)}')
    a(f'v_mov_b32 v49, v{ri(31)}')
    a('ds_write_b64 v57, v[48:49]')
    a('s_waitcnt lgkmcnt(0)')
    a('s_barrier')
    for c in range(4):
        a(f'ds_read_b64 v[{40 + 2 * c}:{41 + 2 * c}], v56 offset:{c * 512}')
    a('v_lshlrev_b32 v56, 3, v75')
    a(f'v_add_u32 v56, {EEND}, v56')
    a('s_mul_i32 s31, s24, 5120')
    a('s_waitcnt lgkmcnt(0)')
    def cstep(dr, di, sr, si, er_, ei_, Lr, Li):
        a(f'v_fma_f32 v52, -v{Li}, v{si}, v{er_}')
        a(f'v_fma_f32 v53, v{Li}, v{sr}, v{ei_}')
        a(f'v_fma_f32 v{dr}, v{Lr}, v{sr}, v52')
        a(f'v_fma_f32 v{di}, v{Lr}, v{si}, v53')
    cstep(48, 49, 40, 41, 42, 43, 86, 87)
    cstep(48, 49, 48, 49, 44, 45, 86, 87)
    cstep(48, 49, 48, 49, 46, 47, 86, 87)
    a('s_cmp_lg_u32 s47, 0')
    a('s_cbranch_scc1 K1_U_NOPUB')
    a('buffer_store_dwordx2 v[48:49], v56, s[20:23], s31 offen sc1')
    a.label('K1_U_NOPUB')
    if STU: stamp(a, 1)
    for j in range(32):
        a(f'v_mul_f32 v58, v85, v{ri(j)}')
        a(f'v_mul_f32 v59, v85, v{rr(j)}')
        a(f'v_fma_f32 v{rr(j)}, v84, v{rr(j)}, -v58')
        a(f'v_fma_f32 v{ri(j)}, -v84, v{ri(j)}, -v59')
    a('v_mov_b32 v50, 0')
    a('v_mov_b32 v51, 0')
    a('s_cmp_eq_u32 s24, 0')
    a('s_cbranch_scc1 K1_U_CARRY')
    a('s_mov_b32 s55, 0')
    a.label('K1_U_FPOLL')
    a('s_waitcnt vmcnt(0)')
    a('v_readfirstlane_b32 s30, v83')
    a('s_and_b32 s30, s30, s54')
    a('s_cmp_eq_u32 s30, s54')
    a('s_cbranch_scc1 K1_U_POLL')
    a('s_add_u32 s55, s55, 1')
    a('s_cmp_gt_u32 s55, 0x40000')
    a('s_cbranch_scc1 K1_U_POLL')
    a('s_sleep 1')
    a('global_load_dword v83, v82, s[94:95] sc1')
    a('s_branch K1_U_FPOLL')
    def er(c): return 192 + 2 * c
    a.label('K1_U_POLL')
    for c in range(15):
        if c:
            a(f's_cmp_le_u32 s24, {c}')
            a('s_cbranch_scc1 K1_U_ELD')
        a(f's_mov_b32 s30, {c * 5120}')
        a(f'buffer_load_dwordx2 v[{er(c)}:{er(c)+1}], v56, s[20:23], s30 offen sc1')
    a.label('K1_U_ELD')
    a('s_mov_b64 s[56:57], 0')
    a('s_waitcnt vmcnt(0)')
    for c in range(15):
        if c:
            a(f's_cmp_le_u32 s24, {c}')
            a('s_cbranch_scc1 K1_U_CHK')
        a(f'v_cmp_eq_u32 vcc, -1, v{er(c)}')
        a('s_or_b64 s[56:57], s[56:57], vcc')
    a.label('K1_U_CHK')
    a('s_cmp_eq_u64 s[56:57], 0')
    a('s_cbranch_scc1 K1_U_GOT')
    a('s_add_u32 s55, s55, 1')
    a('s_cmp_gt_u32 s55, 0x40000')
    a('s_cbranch_scc1 K1_U_GOT')
    a('s_sleep 1')
    a('s_branch K1_U_POLL')
    a.label('K1_U_GOT')
    if STU == 1: stamp(a, 2)
    for c in range(15):
        cstep(50, 51, 50, 51, er(c), er(c) + 1, 88, 89)
        a(f's_cmp_eq_u32 s24, {c + 1}')
        a('s_cbranch_scc1 K1_U_CARRY')
    a.label('K1_U_CARRY')
    if STU == 2: stamp(a, 2)
    a('s_cmp_eq_u32 s47, 0')
    a('s_cbranch_scc1 K1_U_RH0')
    cstep(50, 51, 50, 51, 40, 41, 86, 87)
    cstep(50, 51, 50, 51, 42, 43, 86, 87)
    a('v_mov_b32 v40, v44')
    a('v_mov_b32 v41, v45')
    a.label('K1_U_RH0')
    cstep(54, 55, 50, 51, 40, 41, 86, 87)
    a('v_cmp_eq_u32 vcc, 1, v72')
    a('s_nop 1')
    a('v_cndmask_b32 v50, v50, v54, vcc')
    a('v_cndmask_b32 v51, v51, v55, vcc')
    a('v_mul_f32 v52, v81, v51')
    a('v_mul_f32 v53, v81, v50')
    a('v_fma_f32 v54, v80, v50, -v52')
    a('v_fma_f32 v55, v80, v51, v53')
    TB = 16384
    PS = 64 * 272
    a('v_and_b32 v56, 31, v1')
    a('s_lshl_b32 s30, s46, 5')
    a('v_add_u32 v56, s30, v56')
    a('v_mul_u32_u24 v56, 272, v56')
    a('v_lshl_add_u32 v56, v72, 6, v56')
    a('s_lshl_b32 s31, s47, 7')
    a('v_add_u32 v56, s31, v56')
    a('v_mul_f32 v52, v85, v55')
    a('v_mul_f32 v53, v85, v54')
    a('v_fma_f32 v57, v84, v54, -v52')
    a('v_fma_f32 v55, -v84, v55, -v53')
    a('v_mov_b32 v54, v57')
    for j in range(32):
        a(f'v_add_f32 v{rr(j)}, v{rr(j)}, v54')
        a(f'v_add_f32 v{ri(j)}, v{ri(j)}, v55')
        if j < 31:
            a('v_mul_f32 v52, v81, v55')
            a('v_mul_f32 v53, v81, v54')
            a('v_fma_f32 v54, v80, v54, v52')
            a('v_fma_f32 v55, v80, v55, -v53')
        if (j & 7) == 7:
            q = j >> 3
            for part, rf in ((0, rr), (1, ri)):
                o = 60 + part * 4
                for i in range(4):
                    a(f'v_cvt_pk_bf16_f32 v{o + i}, v{rf(8 * q + 2 * i)}, v{rf(8 * q + 2 * i + 1)}')
                a(f'ds_write_b128 v56, v[{o}:{o+3}] offset:{TB + part * PS + q * 16}')
    a('v_lshrrev_b32 v57, 4, v1')
    a('v_bfe_u32 v58, v1, 2, 2')
    a('v_lshl_add_u32 v57, v57, 3, v58')
    a('v_add_u32 v57, s30, v57')
    a('v_mul_u32_u24 v57, 272, v57')
    a('v_and_b32 v58, 3, v1')
    a('v_lshl_add_u32 v57, v58, 3, v57')
    a('v_add_u32 v57, s31, v57')
    a('v_lshlrev_b32 v58, 4, v1')
    a('s_lshl_b32 s31, s24, 1')
    a('s_add_u32 s31, s31, s47')
    a('s_mul_i32 s31, s31, 40')
    a('s_lshl_b32 s30, s25, 1')
    a('s_add_u32 s31, s31, s30')
    a('s_add_u32 s31, s31, s46')
    a('s_lshl_b32 s31, s31, 12')
    a(f's_add_u32 s31, s31, {HF}')
    a('s_waitcnt lgkmcnt(0)')
    for part in range(2):
        for tb in range(4):
            r = 192 + (part * 4 + tb) * 4
            a(f'ds_read_b64_tr_b16 v[{r}:{r+1}], v57 offset:{TB + part * PS + tb * 32}')
            a(f'ds_read_b64_tr_b16 v[{r+2}:{r+3}], v57 offset:{TB + part * PS + 1088 + tb * 32}')
    for part in range(2):
        for tb in range(4):
            k = part * 4 + tb
            r = 192 + k * 4
            a(f's_waitcnt lgkmcnt({2 * (7 - k)})')
            off = part * 20 * 4096 + tb * 1024
            a(f's_add_u32 s30, s31, {off}')
            a(f'buffer_store_dwordx4 v[{r}:{r+3}], v58, s[20:23], s30 offen {STF}')
    stamp_flush(a, 0, 3)
    a('s_branch K1_END')

    a.label('K1_ISMLP')
    a('s_mul_i32 s25, s46, 3')
    a('s_add_u32 s25, s25, s43')
    a('s_sub_u32 s25, s25, 5')
    a('s_cmp_lt_u32 s52, 4')
    a('s_cbranch_scc1 K1_MLP')
    a('v_lshrrev_b32 v2, 3, v1')
    a('v_lshrrev_b32 v3, 4, v1')
    a('v_and_b32 v20, 7, v1')
    a('v_xor_b32 v21, v20, v3')
    a('v_xor_b32 v22, 4, v21')
    a('v_lshlrev_b32 v21, 4, v21')
    a('v_lshlrev_b32 v22, 4, v22')
    a('s_movk_i32 s30, 1280')
    a('v_mul_lo_u32 v74, v2, s30')
    a('v_add_u32 v4, v74, v21')
    a('v_add_u32 v5, v74, v22')
    a('v_and_b32 v74, 31, v1')
    a('v_lshlrev_b32 v75, 2, v72')
    a('v_xor_b32 v74, v74, v75')
    a('v_xor_b32 v75, 8, v74')
    a('s_movk_i32 s30, 3072')
    a('v_mul_lo_u32 v76, v72, s30')
    a('v_lshl_add_u32 v6, v74, 4, v76')
    a('v_lshl_add_u32 v7, v75, 4, v76')
    a('s_lshl_b32 s26, s24, 7')
    a('s_lshl_b32 s30, s3, 5')
    a('s_add_u32 s26, s26, s30')
    a('s_mul_i32 s26, s26, 1280')
    a('s_mul_i32 s27, s3, 49152')
    a('s_lshl_b32 s30, s25, 9')
    a('s_add_u32 s27, s27, s30')
    srd(a, 12, 84, 85, 1966080)
    k1_loader(a, True)
    mlp_bias_loads(a)
    mish_consts(a)
    a('v_lshlrev_b32 v2, 4, v1')
    a('s_lshl_b32 s30, s3, 14')
    a(f's_add_u32 s30, s30, {WB[1]}')
    a('v_add_u32 v2, s30, v2')
    a('s_barrier')
    for q in range(16):
        r = acc(2, 0) + q * 4
        a(f'ds_read_b128 v[{r}:{r+3}], v2 offset:{q * 1024}')
    a('s_waitcnt vmcnt(0) lgkmcnt(0)')
    mlp_epilogue(a, (2, 3), 'L')
    a('s_endpgm')

    a.label('K1_MLP')
    a('v_lshrrev_b32 v3, 4, v1')
    a('v_and_b32 v23, 31, v1')
    a('v_lshlrev_b32 v23, 7, v23')
    a('v_bfe_u32 v73, v1, 1, 3')
    for ks in range(4):
        a(f'v_add_u32 v74, {2 * ks}, v72')
        a('v_xor_b32 v74, v74, v73')
        a(f'v_lshl_add_u32 v{8 + ks}, v74, 4, v23')
    a('v_bfe_u32 v74, v1, 2, 2')
    a('v_lshl_add_u32 v75, v72, 3, v74')
    a('v_lshlrev_b32 v75, 9, v75')
    a('v_bfe_u32 v76, v1, 1, 1')
    a('v_lshl_add_u32 v75, v76, 3, v75')
    a('v_and_b32 v76, 1, v3')
    a('v_and_b32 v77, 1, v1')
    a('v_lshl_add_u32 v76, v76, 1, v77')
    a('s_lshl_b32 s30, s3, 3')
    a('v_add_u32 v76, s30, v76')
    a('v_lshlrev_b32 v74, 2, v74')
    for jt in range(2):
        a(f'v_add_u32 v77, {4 * jt}, v76')
        a('v_xor_b32 v77, v77, v74')
        a(f'v_lshl_add_u32 v{12 + jt}, v77, 4, v75')
        a(f'v_add_u32 v{12 + jt}, {WB[0]}, v{12 + jt}')
        a(f'v_add_u32 v{16 + jt}, 0x10000, v{12 + jt}')
    mlp_bias_loads(a)
    mish_consts(a)
    T = list(range(56, 64))
    a('v_and_b32 v24, 1, v0')
    a('v_lshlrev_b32 v24, 31, v24')
    a(f'v_add_u32 v25, {LUT_LO2}, v0')
    a('v_lshrrev_b32 v25, 1, v25')
    a('v_lshl_or_b32 v25, v25, 16, v24')
    a('v_lshlrev_b32 v26, 2, v0')
    for i in range(0, 14, 2):
        a(f'v_add_u32 v27, {(128 * i) << 16}, v25')
        a(f'v_add_u32 v28, {(128 * (i + 1)) << 16}, v25')
        mish_pair(a, 27, 28, None, T, want_th=True)
        a(f'ds_write_b32 v26, v{T[0]} offset:{LUTB + 1024 * i}')
        a(f'ds_write_b32 v26, v{T[1]} offset:{LUTB + 1024 * (i + 1)}')
    for i in range(128):
        a(f'v_mov_b32 v{ACC + i}, 0')
    a('s_waitcnt lgkmcnt(0)')
    k1_mainloop(a, True)
    stamp(a, 2)
    a('v_lshlrev_b32 v2, 4, v1')
    a('s_lshl_b32 s30, s3, 14')
    a(f's_add_u32 s30, s30, {WB[1]}')
    a('v_add_u32 v2, s30, v2')
    a('s_nop 7')
    for q in range(16):
        r = acc(2, 0) + q * 4
        a(f'ds_write_b128 v2, v[{r}:{r+3}] offset:{q * 1024}')
    a('s_waitcnt vmcnt(0) lgkmcnt(0)')
    a('s_barrier')
    mlp_epilogue(a, (0, 1), 'C')
    stamp_flush(a, 0, 3, 1)
    a.label('K1_END')
    a('s_endpgm')

def qacc(fa, fb): return (fa * 5 + fb) * 4
QD = 5
def qfr(st, i): return 16 + st * 36 + i * 4

def q_loads(a, st):
    for fa in range(4):
        r = qfr(st, fa)
        a(f'buffer_load_dwordx4 v[{r}:{r+3}], v2, s[20:23], s26 offen offset:{fa * 1024}')
    for fb in range(5):
        r = qfr(st, 4 + fb)
        if fb < 4:
            a(f'buffer_load_dwordx4 v[{r}:{r+3}], v2, s[20:23], s27 offen offset:{fb * 1024}')
        else:
            a(f'buffer_load_dwordx4 v[{r}:{r+3}], v3, s[20:23], s27 offen')
    a('s_add_u32 s26, s26, 4096')
    a('s_add_u32 s27, s27, 5120')

def q_loop(a, KS, nKS, abase, bbase):
    a(f's_mul_i32 s26, s24, {nKS}')
    a(f's_mul_i32 s30, s31, {KS}')
    a('s_add_u32 s26, s26, s30')
    a('s_lshl_b32 s26, s26, 12')
    a(f's_add_u32 s26, s26, {abase}')
    a(f's_mul_i32 s27, s25, {nKS}')
    a('s_add_u32 s27, s27, s30')
    a('s_mul_i32 s27, s27, 5120')
    a(f's_add_u32 s27, s27, {bbase}')
    for s in range(min(QD, KS)):
        q_loads(a, s)
    for i in range(80):
        a(f'v_accvgpr_write_b32 a{i}, 0')
    for s in range(KS):
        st = s % QD
        inflight = min(QD, KS - s)
        a(f's_waitcnt vmcnt({9 * (inflight - 1)})')
        if s == 0: stamp(a, 1)
        for fa in range(4):
            for fb in range(5):
                c = qacc(fa, fb); A = qfr(st, fa); B = qfr(st, 4 + fb)
                a(f'v_mfma_f32_16x16x32_bf16 a[{c}:{c+3}], v[{A}:{A+3}], v[{B}:{B+3}], a[{c}:{c+3}]')
        if s + QD < KS:
            q_loads(a, st)

def common_prologue(a, endlabel, nwg):
    a(f's_cmp_ge_u32 s2, {nwg}')
    a(f's_cbranch_scc1 {endlabel}')
    a(f's_load_dwordx2 s[6:7], s[0:1], {KA["ws"]}')
    a('v_lshrrev_b32 v2, 6, v0')
    a('v_and_b32 v1, 63, v0')
    a('v_readfirstlane_b32 s3, v2')
    a('s_waitcnt lgkmcnt(0)')
    srd(a, 20, 6, 7, WS_SIZE)
    stamp(a, 0)

def gen_k2(a):
    a.raw('.p2align 8')
    a.label('k2_kernel')
    common_prologue(a, 'K2_END', 160)
    a.label('K2_FIX')
    a('s_mov_b32 s24, s2')
    a('s_mov_b32 s30, 0x33333334')
    a('s_mul_hi_u32 s25, s24, s30')
    a('s_mul_i32 s30, s25, 5')
    a('s_sub_u32 s24, s24, s30')
    a(f's_load_dwordx4 s[36:39], s[0:1], {KA["lre"]}')
    a(f's_load_dwordx2 s[40:41], s[0:1], {KA["logdt"]}')
    a('v_lshrrev_b32 v2, 4, v0')
    a('v_and_b32 v3, 15, v0')
    a('s_lshl_b32 s30, s25, 4')
    a('v_add_u32 v4, s30, v2')
    a('s_movk_i32 s30, 1280')
    a('v_mul_lo_u32 v4, v4, s30')
    a('s_lshl_b32 s31, s24, 4')
    a('v_add_u32 v4, v3, v4')
    a('v_add_u32 v4, s31, v4')
    a('v_lshlrev_b32 v4, 4, v4')
    a(f'v_add_u32 v4, {SLOC}, v4')
    a('s_lshl_b32 s31, s24, 7')
    def sloc_loads():
        for part in range(2):
            for ch in range(8):
                off = part * 10240 + ch * 1280
                a(f's_movk_i32 s30, {off}')
                a(f'buffer_load_dwordx4 v[{128 + part * 32 + ch * 4}:{131 + part * 32 + ch * 4}], v4, s[20:23], s30 offen')
    a('s_cmp_lt_u32 s3, 2')
    a('s_cbranch_scc1 K2_FIX_P1')
    sloc_loads()
    a('s_branch K2_FIX_P2')
    a.label('K2_FIX_P1')
    a('v_add_u32 v5, s31, v0')
    a('v_lshlrev_b32 v6, 2, v5')
    a(f'v_add_u32 v6, {EEND}, v6')
    for c in range(31):
        a(f's_mov_b32 s30, {c * 5120}')
        a(f'buffer_load_dword v{64 + 2 * c}, v6, s[20:23], s30 offen')
        a(f'buffer_load_dword v{65 + 2 * c}, v6, s[20:23], s30 offen offset:2560')
    a('v_lshlrev_b32 v6, 1, v5')
    a('s_waitcnt lgkmcnt(0)')
    a('global_load_ushort v10, v6, s[36:37]')
    a('global_load_ushort v11, v6, s[38:39]')
    a('global_load_ushort v12, v6, s[40:41]')
    sloc_loads()
    a('s_waitcnt vmcnt(16)')
    lam_compute(a, 10, 11, 12, 13, 14, 15, 16)
    a('v_add_f32 v15, -1.0, v13')
    a('v_mul_f32 v16, v10, v10')
    a('v_fma_f32 v16, v11, v11, v16')
    a('v_rcp_f32 v16, v16')
    a('v_mul_f32 v17, v15, v10')
    a('v_fma_f32 v17, v14, v11, v17')
    a('v_mul_f32 v18, v14, v10')
    a('v_fma_f32 v18, -v15, v11, v18')
    a('v_add_f32 v16, v16, v16')
    a('v_mul_f32 v17, v17, v16')
    a('v_mul_f32 v18, v18, v16')
    def csq(dr, di, sr, si):
        a(f'v_mul_f32 v24, v{si}, v{si}')
        a(f'v_mul_f32 v25, v{sr}, v{si}')
        a(f'v_fma_f32 v{dr}, v{sr}, v{sr}, -v24')
        a(f'v_add_f32 v{di}, v25, v25')
    csq(19, 20, 13, 14)
    csq(21, 22, 19, 20)
    csq(19, 20, 21, 22)
    csq(19, 20, 19, 20)
    csq(19, 20, 19, 20)
    csq(19, 20, 19, 20)
    a('v_mov_b32 v26, 0')
    a('v_mov_b32 v27, 0')
    for c in range(31):
        a(f's_cmp_le_u32 s25, {c}')
        a('s_cbranch_scc1 K2_FIX_CARRY_DONE')
        a(f'v_fma_f32 v{64 + 2 * c}, -v20, v27, v{64 + 2 * c}')
        a(f'v_fma_f32 v{65 + 2 * c}, v20, v26, v{65 + 2 * c}')
        a(f'v_fma_f32 v28, v19, v26, v{64 + 2 * c}')
        a(f'v_fma_f32 v27, v19, v27, v{65 + 2 * c}')
        a('v_mov_b32 v26, v28')
    a.label('K2_FIX_CARRY_DONE')
    a('v_mul_f32 v28, v14, v27')
    a('v_mul_f32 v29, v14, v26')
    a('v_fma_f32 v30, v13, v26, -v28')
    a('v_fma_f32 v31, v13, v27, v29')
    a('v_lshlrev_b32 v6, 3, v0')
    for q in range(16):
        a(f'ds_write_b64 v6, v[30:31] offset:{q * 1024}')
        if q < 15:
            a('v_mul_f32 v28, v22, v31')
            a('v_mul_f32 v29, v22, v30')
            a('v_fma_f32 v32, v21, v30, -v28')
            a('v_fma_f32 v31, v21, v31, v29')
            a('v_mov_b32 v30, v32')
    a('v_mov_b32 v32, v13')
    a('v_mov_b32 v33, v14')
    a('v_mov_b32 v34, v17')
    a('v_mov_b32 v35, v18')
    a('v_lshlrev_b32 v6, 4, v0')
    a('ds_write_b128 v6, v[32:35] offset:16384')
    a.label('K2_FIX_P2')
    a('s_waitcnt lgkmcnt(0)')
    stamp(a, 1)
    a('s_barrier')
    a('v_lshlrev_b32 v5, 10, v2')
    a('v_lshl_add_u32 v5, v3, 6, v5')
    a('v_lshlrev_b32 v6, 7, v3')
    for i in range(4):
        a(f'ds_read_b128 v[{16 + 4 * i}:{19 + 4 * i}], v5 offset:{16 * i}')
    for ch in range(8):
        a(f'ds_read_b128 v[{32 + 4 * ch}:{35 + 4 * ch}], v6 offset:{16384 + 16 * ch}')
    a('s_mul_i32 s30, s25, 40')
    a('s_lshl_b32 s31, s24, 2')
    a('s_add_u32 s30, s30, s31')
    a('v_lshrrev_b32 v7, 2, v3')
    a('v_add_u32 v7, s30, v7')
    a('v_lshrrev_b32 v8, 2, v2')
    a('v_lshl_add_u32 v7, v7, 2, v8')
    a('v_lshlrev_b32 v7, 10, v7')
    a('v_and_b32 v8, 3, v2')
    a('v_lshl_add_u32 v7, v8, 6, v7')
    a('v_and_b32 v8, 3, v3')
    a('v_lshl_add_u32 v7, v8, 8, v7')
    a(f'v_add_u32 v7, {HF}, v7')
    a('s_mov_b32 s30, 81920')
    a('s_waitcnt vmcnt(0) lgkmcnt(0)')
    stamp(a, 2)
    for ch in range(8):
        gr = 16 + 2 * ch; gi = gr + 1
        lr = 32 + 4 * ch; li = lr + 1; cr = lr + 2; ci = lr + 3
        for j in range(4):
            sr = 128 + ch * 4 + j; si = 160 + ch * 4 + j
            a(f'v_add_f32 v{sr}, v{sr}, v{gr}')
            a(f'v_add_f32 v{si}, v{si}, v{gi}')
            a(f'v_mul_f32 v8, v{ci}, v{si}')
            a(f'v_mul_f32 v9, v{ci}, v{sr}')
            a(f'v_fma_f32 v{64 + j * 8 + ch}, v{cr}, v{sr}, -v8')
            a(f'v_fma_f32 v{96 + j * 8 + ch}, -v{cr}, v{si}, -v9')
            if j < 3:
                a(f'v_mul_f32 v8, v{li}, v{gi}')
                a(f'v_mul_f32 v9, v{li}, v{gr}')
                a(f'v_fma_f32 v10, v{lr}, v{gr}, -v8')
                a(f'v_fma_f32 v{gi}, v{lr}, v{gi}, v9')
                a(f'v_mov_b32 v{gr}, v10')
    for j in range(4):
        for part in range(2):
            b0 = (64 if part == 0 else 96) + j * 8
            o = 128 + (j * 2 + part) * 4
            for i in range(4):
                a(f'v_cvt_pk_bf16_f32 v{o + i}, v{b0 + 2 * i}, v{b0 + 2 * i + 1}')
            so = '0' if part == 0 else 's30'
            a(f'buffer_store_dwordx4 v[{o}:{o+3}], v7, s[20:23], {so} offen offset:{j * 16}')
    stamp_flush(a, 1, 3)
    a.label('K2_END')
    a('s_endpgm')

def gen_k3(a):
    a.raw('.p2align 8')
    a.label('k3_kernel')
    a('s_cmp_ge_u32 s2, 256')
    a('s_cbranch_scc1 K3_END')
    a(f's_load_dwordx2 s[6:7], s[0:1], {KA["ws"]}')
    a(f's_load_dwordx2 s[4:5], s[0:1], {KA["x"]}')
    a(f's_load_dwordx2 s[32:33], s[0:1], {KA["dskip"]}')
    a(f's_load_dwordx2 s[34:35], s[0:1], {KA["out"]}')
    a('v_lshrrev_b32 v2, 6, v0')
    a('v_and_b32 v1, 63, v0')
    a('v_readfirstlane_b32 s3, v2')
    if K3MAP == 0:
        a('s_and_b32 s24, s2, 31')
        a('s_lshr_b32 s25, s2, 5')
    else:
        a('s_bfe_u32 s24, s2, 0x20001')
        a('s_lshl_b32 s24, s24, 3')
        a('s_bfe_u32 s30, s2, 0x30003')
        a('s_add_u32 s24, s24, s30')
        a('s_and_b32 s25, s2, 1')
        a('s_lshl_b32 s25, s25, 2')
        a('s_lshr_b32 s30, s2, 6')
        a('s_add_u32 s25, s25, s30')
    a('v_lshlrev_b32 v2, 4, v1')
    a('v_add_u32 v3, 4096, v2')
    a('s_lshl_b32 s30, s24, 6')
    a('s_lshl_b32 s31, s3, 4')
    a('s_add_u32 s30, s30, s31')
    a('v_lshrrev_b32 v5, 4, v1')
    a('v_lshlrev_b32 v5, 2, v5')
    a('v_add_u32 v5, s30, v5')
    a('v_lshlrev_b32 v6, 3, v5')
    a(f'v_add_u32 v6, {GATE}, v6')
    a('s_mul_i32 s30, s25, 80')
    a('v_and_b32 v8, 15, v1')
    a('v_add_u32 v8, s30, v8')
    a('v_lshlrev_b32 v9, 1, v8')
    a('s_movk_i32 s30, 1280')
    a('v_mul_lo_u32 v10, v5, s30')
    a('v_add_u32 v10, v10, v9')
    a('v_lshlrev_b32 v11, 1, v10')
    a('s_waitcnt lgkmcnt(0)')
    srd(a, 20, 6, 7, WS_SIZE)
    srd(a, 8, 4, 5, 2621440)
    srd(a, 12, 34, 35, 5242880)
    stamp(a, 0)
    G0 = 196
    a(f'buffer_load_dwordx4 v[{G0}:{G0+3}], v6, s[20:23], 0 offen')
    a(f'buffer_load_dwordx4 v[{G0+4}:{G0+7}], v6, s[20:23], 0 offen offset:16')
    for fb in range(5):
        a(f'global_load_ushort v{204 + fb}, v9, s[32:33] offset:{32 * fb}')
    for r in range(4):
        a(f's_mov_b32 s30, {r * 1280}')
        for fb in range(5):
            a(f'buffer_load_ushort v{210 + fb * 4 + r}, v10, s[8:11], s30 offen offset:{32 * fb}')
    a('s_and_b32 s31, s3, 1')
    a('s_cmp_ge_u32 s3, 2')
    a('s_cbranch_scc1 K3_H')
    q_loop(a, 24, 48, ACTF, W2F)
    a('s_branch K3_RED')
    a.label('K3_H')
    q_loop(a, 20, 40, HF, CF)
    a.label('K3_RED')
    stamp(a, 2)
    a('s_nop 7')
    a('s_mul_i32 s30, s3, 20480')
    a('v_add_u32 v4, s30, v2')
    for t in range(20):
        a(f'ds_write_b128 v4, a[{t * 4}:{t * 4 + 3}] offset:{t * 1024}')
    for fb in range(5):
        a(f'v_lshlrev_b32 v{204 + fb}, 16, v{204 + fb}')
        for r in range(4):
            x = 210 + fb * 4 + r
            a(f'v_lshlrev_b32 v{x}, 16, v{x}')
            a(f'v_mul_f32 v{x}, v{x}, v{204 + fb}')
        round_bf16_pair(a, 210 + fb * 4, 211 + fb * 4, 12)
        round_bf16_pair(a, 212 + fb * 4, 213 + fb * 4, 12)
    a('s_waitcnt lgkmcnt(0)')
    a('s_barrier')
    a('s_mul_i32 s30, s3, 5120')
    a('v_add_u32 v4, s30, v2')
    a('v_add_u32 v7, 40960, v4')
    for u in range(4):
        for fb in range(5):
            r = 16 + (u * 5 + fb) * 4
            a(f'ds_read_b128 v[{r}:{r+3}], v{4 if u < 2 else 7} offset:{(u & 1) * 20480 + fb * 1024}')
    a('s_waitcnt lgkmcnt(0)')
    for fb in range(5):
        for r in range(4):
            d = 16 + fb * 4 + r
            a(f'v_add_f32 v{d}, v{d}, v{d + 20}')
            a(f'v_add_f32 v{d + 40}, v{d + 40}, v{d + 60}')
        d = 16 + fb * 4
        round_bf16_pair(a, d, d + 1, 12)
        round_bf16_pair(a, d + 2, d + 3, 12)
        for r in range(4):
            a(f'v_mul_f32 v{d + r}, v{d + r}, v{G0 + 1 + 2 * r}')
        round_bf16_pair(a, d, d + 1, 12)
        round_bf16_pair(a, d + 2, d + 3, 12)
        for r in range(4):
            y = d + 40 + r; x = 210 + fb * 4 + r
            a(f'v_add_f32 v{y}, v{y}, v{x}')
            a(f'v_mul_f32 v{y}, v{G0 + 2 * r}, v{y}')
            a(f'v_add_f32 v{y}, v{y}, v{d + r}')
    for r in range(4):
        a(f's_mov_b32 s30, {r * 2560}')
        for fb in range(5):
            a(f'buffer_store_dword v{56 + fb * 4 + r}, v11, s[12:15], s30 offen offset:{64 * fb}')
    stamp_flush(a, 2, 3)
    a.label('K3_END')
    a('s_endpgm')

def desc(name, vgpr=256):
    return f'''.p2align 6
.amdhsa_kernel {name}
  .amdhsa_next_free_vgpr {vgpr}
  .amdhsa_next_free_sgpr 102
  .amdhsa_accum_offset 256
  .amdhsa_group_segment_fixed_size 0
  .amdhsa_kernarg_size 136
  .amdhsa_user_sgpr_count 2
  .amdhsa_user_sgpr_kernarg_segment_ptr 1
  .amdhsa_system_sgpr_workgroup_id_x 1
  .amdhsa_float_denorm_mode_32 3
.end_amdhsa_kernel
'''

def main(out):
    hdr = open(f'cdna_kernels/{NAME}.s.ref').read().split('; Override launch')[0]
    a.raw(hdr.rstrip('\n'))
    a.raw(f'; @launch kernel=k1_kernel grid=(256,1,1) block=(512,1,1) lds={K1_LDS}')
    a.raw('; @launch kernel=k3_kernel grid=(256,1,1) block=(256,1,1) lds=81920')
    a.raw('.amdgcn_target "amdgcn-amd-amdhsa--gfx950"')
    a.raw('.text')
    for k in ('k1_kernel', 'k3_kernel'):
        a.raw(f'.globl {k}')
        a.raw(f'.type {k},@function')
    gen_k1(a); gen_k3(a)
    a.raw('.section .rodata,"a"')
    a.raw(desc('k1_kernel')); a.raw(desc('k3_kernel', 336))
    t = a.text()
    open(out, 'w').write(t)
    w = lint(t)
    for x in w[:40]: print('HAZARD', x)
    print('lines', len(t.split('\n')), 'bytes', len(t), 'hazards', len(w))

if __name__ == '__main__':
    main(sys.argv[1] if len(sys.argv) > 1 else f'cdna_kernels/{NAME}.s')
```

```python
import sys, struct
from asmlib import Asm, lint

NAME = 'gated_mix__ssm_conv_s5__dense_activation_mish__prompt'
def f2h(x): return '0x%08x' % struct.unpack('<I', struct.pack('<f', x))[0]

ACTF = 0x0000000
HF   = 0x0800000
W2F  = 0x1000000
CF   = 0x1200000
SLOC = 0x1400000
EEND = 0x2000000
GATE = 0x2100000
OB   = 0x2200000
WS_SIZE = 0x4000000

KA = dict(x=0, lre=8, lim=16, bre=24, bim=32, cre=40, cim=48, logdt=56, dskip=64, bx=72, w1=80, b1=88, w2=96, gw=104, out=112, dbg=120, ws=128)

LOG2E = f2h(1.4426950408889634)
LN2 = f2h(0.6931471805599453)
M2LOG2E = f2h(-2 * 1.4426950408889634)
INV2PI = f2h(0.15915494309189535)

a = Asm()
import os
DIAG = int(os.environ.get('DIAG', '0'))
EXP = int(os.environ.get('EXP', '0'))
PF = int(os.environ.get('PF', '0'))
STF = os.environ.get('STF', 'sc1')
K3MAP = int(os.environ.get('K3MAP', '0'))
PRIO = int(os.environ.get('PRIO', '0'))
STAMP = 0x3000000
SR = [98, 100, 82, 80]
STU = int(os.environ.get('STU', '0'))
def stamp(a, i):
    if not DIAG: return
    a(f's_memrealtime s[{SR[i]}:{SR[i] + 1}]')
    a('s_waitcnt lgkmcnt(0)')
def stamp_flush(a, kid, n, role=0):
    if not DIAG: return
    a('s_waitcnt vmcnt(0) lgkmcnt(0)')
    a(f's_memrealtime s[{SR[n]}:{SR[n] + 1}]')
    a('s_waitcnt lgkmcnt(0)')
    lab = a.newlabel('LST')
    a('s_cmp_lg_u32 s3, 0')
    a(f's_cbranch_scc1 {lab}')
    if DIAG == 2:
        a('v_mov_b32 v2, 0')
        a('s_mov_b64 exec, 1')
        if kid == 0:
            a(f's_not_b32 s30, s{SR[0]}')
            a('v_mov_b32 v3, s30')
            a('global_atomic_umax v2, v3, s[94:95] offset:64')
            for i in range(1, n + 1):
                a(f'v_mov_b32 v3, s{SR[i]}')
                a(f'global_atomic_umax v2, v3, s[94:95] offset:{68 + 12 * role + 4 * (i - 1)}')
        else:
            a('s_load_dwordx2 s[94:95], s[0:1], 120')
            a('s_waitcnt lgkmcnt(0)')
            a(f's_not_b32 s30, s{SR[0]}')
            a('v_mov_b32 v3, s30')
            a('global_atomic_umax v2, v3, s[94:95] offset:28')
            for i in range(1, n + 1):
                a(f'v_mov_b32 v3, s{SR[i]}')
                a(f'global_atomic_umax v2, v3, s[94:95] offset:{32 + 4 * (i - 1)}')
            a('s_sub_u32 s96, s94, 512')
            a('s_subb_u32 s97, s95, 0')
            for i in range(7):
                a(f'global_load_dword v3, v2, s[96:97] offset:{64 + 4 * i} sc1')
                a('s_waitcnt vmcnt(0)')
                a(f'global_store_dword v2, v3, s[94:95] offset:{4 * i}')
    else:
        a('s_lshl_b32 s30, s2, 6')
        a(f's_add_u32 s30, s30, {STAMP + kid * 65536}')
        a('v_mov_b32 v2, 0')
        a('s_mov_b64 exec, 1')
        for i in range(n + 1):
            a(f'v_mov_b32 v3, s{SR[i]}')
            a(f'buffer_store_dword v3, v2, s[20:23], s30 offen offset:{4 * i}')
    a.label(lab)

def srd(a, s, lo, hi_reg, size):
    a(f's_mov_b32 s{s}, s{lo}')
    a(f's_and_b32 s{s+1}, s{hi_reg}, 0xffff')
    a(f's_mov_b32 s{s+2}, {size}')
    a(f's_mov_b32 s{s+3}, 0x00020000')

def round_bf16_pair(a, x0, x1, t):
    a(f'v_cvt_pk_bf16_f32 v{t}, v{x0}, v{x1}')
    a(f'v_lshlrev_b32 v{x0}, 16, v{t}')
    a(f'v_and_b32 v{x1}, 0xffff0000, v{t}')

def mish_consts(a):
    a(f's_mov_b32 s32, {LOG2E}')
    a(f's_mov_b32 s33, {LN2}')
    a(f's_mov_b32 s34, {M2LOG2E}')
    a(f's_mov_b32 s35, {f2h(2.0**-12)}')
    a(f's_mov_b32 s36, {f2h(2.0**-6)}')

def mish_pair(a, x0, x1, out, T, want_th=False):
    e0, e1, l0, l1, s0, s1, d0, d1 = T
    a(f'v_mul_f32 v{e0}, -abs(v{x0}), s32')
    a(f'v_mul_f32 v{e1}, -abs(v{x1}), s32')
    a(f'v_exp_f32 v{e0}, v{e0}')
    a(f'v_exp_f32 v{e1}, v{e1}')
    a(f'v_max_f32 v{s0}, 0, v{x0}')
    a(f'v_max_f32 v{s1}, 0, v{x1}')
    round_bf16_pair(a, e0, e1, d0)
    a(f'v_add_f32 v{l0}, 1.0, v{e0}')
    a(f'v_add_f32 v{l1}, 1.0, v{e1}')
    a(f'v_log_f32 v{l0}, v{l0}')
    a(f'v_log_f32 v{l1}, v{l1}')
    a(f'v_cmp_gt_f32 s[38:39], s35, v{e0}')
    a(f'v_cmp_gt_f32 s[40:41], s35, v{e1}')
    a(f'v_mul_f32 v{l0}, s33, v{l0}')
    a(f'v_mul_f32 v{l1}, s33, v{l1}')
    a(f'v_cndmask_b32 v{l0}, v{l0}, v{e0}, s[38:39]')
    a(f'v_cndmask_b32 v{l1}, v{l1}, v{e1}, s[40:41]')
    round_bf16_pair(a, l0, l1, d0)
    a(f'v_add_f32 v{s0}, v{s0}, v{l0}')
    a(f'v_add_f32 v{s1}, v{s1}, v{l1}')
    round_bf16_pair(a, s0, s1, d0)
    a(f'v_mul_f32 v{e0}, s34, v{s0}')
    a(f'v_mul_f32 v{e1}, s34, v{s1}')
    a(f'v_exp_f32 v{e0}, v{e0}')
    a(f'v_exp_f32 v{e1}, v{e1}')
    a(f'v_cmp_gt_f32 s[38:39], s36, v{s0}')
    a(f'v_cmp_gt_f32 s[40:41], s36, v{s1}')
    a(f'v_add_f32 v{d0}, 1.0, v{e0}')
    a(f'v_add_f32 v{d1}, 1.0, v{e1}')
    a(f'v_rcp_f32 v{d0}, v{d0}')
    a(f'v_rcp_f32 v{d1}, v{d1}')
    a(f'v_sub_f32 v{e0}, 1.0, v{e0}')
    a(f'v_sub_f32 v{e1}, 1.0, v{e1}')
    a(f'v_mul_f32 v{e0}, v{e0}, v{d0}')
    a(f'v_mul_f32 v{e1}, v{e1}, v{d1}')
    a(f'v_cndmask_b32 v{e0}, v{e0}, v{s0}, s[38:39]')
    a(f'v_cndmask_b32 v{e1}, v{e1}, v{s1}, s[40:41]')
    round_bf16_pair(a, e0, e1, d0)
    if want_th: return
    a(f'v_mul_f32 v{e0}, v{x0}, v{e0}')
    a(f'v_mul_f32 v{e1}, v{x1}, v{e1}')
    a(f'v_cvt_pk_bf16_f32 v{out}, v{e0}, v{e1}')

def lam_compute(a, vlre, vlim, vldt, lr, li, t0, t1):
    a(f's_mov_b32 s58, {LOG2E}')
    a(f's_mov_b32 s59, {INV2PI}')
    a(f'v_lshlrev_b32 v{vlre}, 16, v{vlre}')
    a(f'v_lshlrev_b32 v{vlim}, 16, v{vlim}')
    a(f'v_lshlrev_b32 v{vldt}, 16, v{vldt}')
    a(f'v_mul_f32 v{t0}, s58, v{vldt}')
    a(f'v_exp_f32 v{t0}, v{t0}')
    a(f's_nop 0')
    a(f'v_cvt_pk_bf16_f32 v{t0}, v{t0}, v{t0}')
    a(f'v_lshlrev_b32 v{vldt}, 16, v{t0}')
    a(f'v_mul_f32 v{t0}, v{vldt}, v{vlre}')
    a(f'v_mul_f32 v{t1}, v{vldt}, v{vlim}')
    a(f'v_mul_f32 v{t0}, s58, v{t0}')
    a(f'v_mul_f32 v{t1}, s59, v{t1}')
    a(f'v_exp_f32 v{t0}, v{t0}')
    a(f'v_fract_f32 v{t1}, v{t1}')
    a(f'v_cos_f32 v{lr}, v{t1}')
    a(f'v_sin_f32 v{li}, v{t1}')
    a(f's_nop 0')
    a(f'v_mul_f32 v{lr}, v{lr}, v{t0}')
    a(f'v_mul_f32 v{li}, v{li}, v{t0}')

LUTB = 0
XB = [16384, 32768, 49152]
WB = [65536, 98304, 131072]
K1_LDS = 163840
ACC = 128
def acc(mt, jt): return ACC + (mt * 2 + jt) * 16
FX = [24, 48]
FW = [40, 64]
LUT_LO2 = (117 << 7) << 1
LUT_N = 14 * 128 * 2
NS = 10

def k1_dma(a, s, mlp):
    b = s % 3
    rowstep = 8 if mlp else 4
    for ii in range(4):
        a(f's_add_u32 m0, s28, {XB[b] + ii * 1024}')
        a(f's_add_u32 s30, s26, {ii * rowstep * 1280 + 128 * s}')
        a(f'buffer_load_dwordx4 v{4 + (ii & 1)}, s[8:11], s30 offen lds')
    if mlp:
        for jj in range(8):
            a(f's_add_u32 m0, s29, {WB[b] + jj * 1024}')
            a(f's_add_u32 s30, s27, {(64 * s + 2 * jj) * 3072}')
            a(f'buffer_load_dwordx4 v{6 + (jj & 1)}, s[12:15], s30 offen lds')
    else:
        for jj in range(4):
            a(f's_add_u32 m0, s28, {WB[b] + jj * 1024}')
            a(f's_add_u32 s30, s27, {jj * 8 * 1280 + 128 * s}')
            a(f'buffer_load_dwordx4 v{6 + (jj & 1)}, s[12:15], s30 offen lds')

def k1_reads(a, s, ks, st, mlp):
    b = s % 3
    n = 0
    for mt in range(4 if mlp else 2):
        r = FX[st] + mt * 4
        a(f'ds_read_b128 v[{r}:{r+3}], v{8 + ks} offset:{XB[b] + mt * 4096}'); n += 1
    for jt in range(2):
        r = FW[st] + jt * 4
        if mlp:
            base = 12 + jt if b < 2 else 16 + jt
            off = (b if b < 2 else 0) * 32768 + ks * 8192
            a(f'ds_read_b64_tr_b16 v[{r}:{r+1}], v{base} offset:{off}'); n += 1
            a(f'ds_read_b64_tr_b16 v[{r+2}:{r+3}], v{base} offset:{off + 2048}'); n += 1
        else:
            base = 12 + ks if b < 2 else 16 + ks
            off = (b if b < 2 else 0) * 32768 + jt * 4096
            a(f'ds_read_b128 v[{r}:{r+3}], v{base} offset:{off}'); n += 1
    return n

def k1_mfma(a, st, mlp):
    for mt in range(4 if mlp else 2):
        for jt in range(2):
            x = FX[st] + mt * 4; w = FW[st] + jt * 4; c = acc(mt, jt)
            if mlp:
                a(f'v_mfma_f32_32x32x16_bf16 v[{c}:{c+15}], v[{w}:{w+3}], v[{x}:{x+3}], v[{c}:{c+15}]')
            else:
                a(f'v_mfma_f32_32x32x16_bf16 v[{c}:{c+15}], v[{x}:{x+3}], v[{w}:{w+3}], v[{c}:{c+15}]')

def k1_mainloop(a, mlp):
    if PRIO: a(f's_setprio {PRIO}')
    for s in range(NS):
        a('s_barrier')
        if s == 0: stamp(a, 1)
        if s == 0 and not mlp:
            a('s_cmp_lg_u32 s3, 0')
            a('s_cbranch_scc1 K1_U_NOAT')
            a('s_mov_b64 s[56:57], exec')
            a('s_mov_b64 exec, 1')
            a('global_atomic_or v82, v83, s[94:95]')
            a('s_mov_b64 exec, s[56:57]')
            a.label('K1_U_NOAT')
        n = k1_reads(a, s, 0, 0, mlp)
        for ks in range(4):
            st = ks & 1
            if ks < 3:
                n2 = k1_reads(a, s, ks + 1, st ^ 1, mlp)
                a(f's_waitcnt lgkmcnt({n2})')
            else:
                a('s_waitcnt lgkmcnt(0)')
            k1_mfma(a, st, mlp)

def k1_loader(a, mlp):
    nd = 12 if mlp else 8
    k1_dma(a, 0, mlp)
    k1_dma(a, 1, mlp)
    for s in range(NS):
        a(f's_waitcnt vmcnt({nd if s < NS - 1 else 0})')
        a('s_barrier')
        if s + 2 < NS:
            k1_dma(a, s + 2, mlp)

def mlp_bias_loads(a):
    a('s_lshl_b32 s42, s25, 8')
    a('s_lshl_b32 s30, s3, 6')
    a('s_add_u32 s42, s42, s30')
    a('v_lshlrev_b32 v74, 4, v72')
    a('s_lshl_b32 s30, s42, 1')
    a('v_add_u32 v74, s30, v74')
    for jt in range(2):
        for ap in range(2):
            r = 96 + (jt * 2 + ap) * 4
            a(f'global_load_dwordx4 v[{r}:{r+3}], v74, s[86:87] offset:{(32 * jt + 16 * ap) * 2}')

def mlp_epilogue(a, mts, tag):
    T = list(range(56, 64))
    for jt in range(2):
        for ap in range(2):
            for i in range(4):
                src = 96 + (jt * 2 + ap) * 4 + i
                d = 24 + jt * 16 + ap * 8 + i * 2
                a(f'v_lshlrev_b32 v{d}, 16, v{src}')
                a(f'v_and_b32 v{d+1}, 0xffff0000, v{src}')
    a('v_bfe_u32 v74, v1, 4, 1')
    a('v_lshlrev_b32 v74, 10, v74')
    a('v_and_b32 v75, 15, v1')
    a('v_lshl_add_u32 v74, v75, 4, v74')
    a('v_lshl_add_u32 v74, v72, 8, v74')
    a('s_mul_i32 s31, s24, 393216')
    a('s_lshl_b32 s30, s42, 7')
    a('s_add_u32 s31, s31, s30')
    if ACTF: a(f's_add_u32 s31, s31, {ACTF}')
    a(f's_mov_b32 s37, {LUT_LO2 | (LUT_LO2 << 16)}')
    a('v_mov_b32 v75, 0')
    groups = [(mt, jt, ap) for mt in mts for jt in range(2) for ap in range(2)]
    def stage_a(g, k):
        mt, jt, ap = g
        for i in range(4):
            c0 = acc(mt, jt) + ap * 8 + i * 2
            b0 = 24 + jt * 16 + ap * 8 + i * 2
            t = 112 + 2 * i
            a(f'v_cvt_pk_bf16_f32 v{t}, v{c0}, v{c0+1}')
            a(f'v_lshlrev_b32 v{c0}, 16, v{t}')
            a(f'v_and_b32 v{c0+1}, 0xffff0000, v{t}')
            a(f'v_pk_add_f32 v[{c0}:{c0+1}], v[{c0}:{c0+1}], v[{b0}:{b0+1}]')
            a(f'v_cvt_pk_bf16_f32 v{t}, v{c0}, v{c0+1}')
            a(f'v_lshlrev_b32 v{c0}, 16, v{t}')
            a(f'v_and_b32 v{c0+1}, 0xffff0000, v{t}')
            a(f'v_pk_lshlrev_b16 v{t+1}, 1, v{t} op_sel_hi:[0,1]')
            a(f'v_pk_lshrrev_b16 v{t}, 15, v{t} op_sel_hi:[0,1]')
            a(f'v_or_b32 v{t}, v{t}, v{t+1}')
            a(f'v_pk_sub_u16 v{t}, v{t}, s37 clamp')
            a(f'v_pk_max_u16 v75, v75, v{t}')
            a(f'v_lshlrev_b32_sdwa v{t+1}, 2, v{t} dst_sel:DWORD dst_unused:UNUSED_PAD src0_sel:DWORD src1_sel:WORD_1')
            a(f'v_lshlrev_b32_sdwa v{t}, 2, v{t} dst_sel:DWORD dst_unused:UNUSED_PAD src0_sel:DWORD src1_sel:WORD_0')
            a(f'ds_read_b32 v{96 + 8 * k + 2 * i}, v{t} offset:{LUTB}')
            a(f'ds_read_b32 v{97 + 8 * k + 2 * i}, v{t+1} offset:{LUTB}')
    def store_g(g, outr):
        mt, jt, ap = g
        off = (mt >> 1) * 196608 + jt * 4096 + 2 * (mt & 1) * 1024 + ap * 512
        a(f's_add_u32 s30, s31, {off}')
        a(f'buffer_store_dwordx4 v[{outr}:{outr+3}], v74, s[20:23], s30 offen {STF}')
    def stage_b(g, k):
        mt, jt, ap = g
        outr = 64 + 4 * k
        for i in range(4):
            c0 = acc(mt, jt) + ap * 8 + i * 2
            th = 96 + 8 * k + 2 * i
            a(f'v_pk_mul_f32 v[{th}:{th+1}], v[{th}:{th+1}], v[{c0}:{c0+1}]')
            a(f'v_cvt_pk_bf16_f32 v{outr + i}, v{th}, v{th+1}')
        store_g(g, outr)
    ng = len(groups)
    stage_a(groups[0], 0)
    for gi in range(ng):
        k = gi & 1
        if gi + 1 < ng:
            stage_a(groups[gi + 1], k ^ 1)
            a('s_waitcnt lgkmcnt(8)')
        else:
            a('s_waitcnt lgkmcnt(0)')
        stage_b(groups[gi], k)
    a(f's_mov_b32 s30, {(LUT_N - 1) | ((LUT_N - 1) << 16)}')
    a('v_pk_sub_u16 v76, v75, s30 clamp')
    a('v_cmp_ne_u32 vcc, 0, v76')
    a(f's_cbranch_vccz K1_MLP_DONE{tag}')
    a('s_waitcnt vmcnt(0)')
    for gi, g in enumerate(groups):
        mt, jt, ap = g
        outr = 64 + 4 * (gi & 1)
        for i in range(4):
            c0 = acc(mt, jt) + ap * 8 + i * 2
            mish_pair(a, c0, c0 + 1, outr + i, T)
        store_g(g, outr)
    a.label(f'K1_MLP_DONE{tag}')

def side_jobs(a):
    a('v_lshlrev_b32 v2, 2, v1')
    a('v_and_b32 v3, 15, v1')
    a('v_lshrrev_b32 v6, 4, v1')
    a('s_movk_i32 s30, 10240')
    a('v_mul_lo_u32 v4, v6, s30')
    a('v_lshl_add_u32 v4, v3, 1, v4')
    a('v_lshlrev_b32 v5, 4, v1')
    a('s_movk_i32 s30, 1280')
    a('v_mul_lo_u32 v7, v3, s30')
    a('v_lshl_add_u32 v7, v6, 4, v7')
    srd(a, 12, 88, 89, 1966080)
    srd(a, 16, 74, 75, 819200)
    srd(a, 48, 76, 77, 819200)
    for j in range(5):
        a(f'global_load_dword v{10 + j}, v2, s[90:91] offset:{256 * j}')
    for i in range(4):
        a(f's_add_u32 s30, s24, {640 * i}')
        a('s_mul_i32 s30, s30, 1280')
        for j in range(5):
            a(f'buffer_load_dword v{16 + 5 * i + j}, v2, s[8:11], s30 offen offset:{256 * j}')
    for i in range(3):
        a(f's_add_u32 s25, s24, {640 * i}')
        a('s_mov_b32 s30, 0x01111112')
        a('s_mul_hi_u32 s40, s25, s30')
        a('s_mul_i32 s41, s40, 240')
        a('s_sub_u32 s41, s25, s41')
        a('s_mov_b32 s30, 0x33333334')
        a('s_mul_hi_u32 s42, s41, s30')
        a('s_mul_i32 s43, s42, 5')
        a('s_sub_u32 s43, s41, s43')
        a('s_mul_i32 s40, s40, 160')
        a('s_lshl_b32 s43, s43, 5')
        a('s_mul_i32 s42, s42, 40960')
        a('s_add_u32 s30, s40, s43')
        a('s_add_u32 s30, s30, s42')
        for k in range(8):
            if k: a('s_add_u32 s30, s30, 1280')
            a(f'buffer_load_ushort v{40 + 8 * i + k}, v4, s[12:15], s30 offen')
    for i in range(3):
        lab = a.newlabel('K1_CF')
        a(f's_add_u32 s25, s24, {640 * i}')
        a('s_mov_b32 s30, 0x0147ae15')
        a('s_mul_hi_u32 s40, s25, s30')
        a('s_mul_i32 s41, s40, 200')
        a('s_sub_u32 s41, s25, s41')
        a('s_mov_b32 s30, 0x33333334')
        a('s_mul_hi_u32 s42, s41, s30')
        a('s_mul_i32 s43, s42, 5')
        a('s_sub_u32 s43, s41, s43')
        a('s_mul_i32 s40, s40, 102400')
        a('s_mul_i32 s43, s43, 20480')
        a('s_add_u32 s30, s40, s43')
        a('s_cmp_ge_u32 s42, 20')
        a(f's_cbranch_scc1 {lab}_im')
        a('s_lshl_b32 s42, s42, 6')
        a('s_add_u32 s30, s30, s42')
        a(f'buffer_load_dwordx4 v[{64 + 4 * i}:{67 + 4 * i}], v7, s[16:19], s30 offen')
        a(f's_branch {lab}_done')
        a.label(f'{lab}_im')
        a('s_sub_u32 s42, s42, 20')
        a('s_lshl_b32 s42, s42, 6')
        a('s_add_u32 s30, s30, s42')
        a(f'buffer_load_dwordx4 v[{64 + 4 * i}:{67 + 4 * i}], v7, s[48:51], s30 offen')
        a.label(f'{lab}_done')
    a('s_barrier')
    a('s_waitcnt vmcnt(0)')
    for i in range(3):
        for k in range(4):
            a(f'v_lshl_or_b32 v{80 + 4 * i + k}, v{41 + 8 * i + 2 * k}, 16, v{40 + 8 * i + 2 * k}')
        a(f's_add_u32 s30, s24, {640 * i}')
        a('s_lshl_b32 s30, s30, 10')
        a(f's_add_u32 s30, s30, {W2F}')
        a(f'buffer_store_dwordx4 v[{80 + 4 * i}:{83 + 4 * i}], v5, s[20:23], s30 offen {STF}')
    for i in range(3):
        lab = a.newlabel('K1_CFS')
        a(f's_add_u32 s30, s24, {640 * i}')
        if i == 2:
            a('s_cmp_ge_u32 s30, 1600')
            a(f's_cbranch_scc1 {lab}')
        a('s_lshl_b32 s30, s30, 10')
        a(f's_add_u32 s30, s30, {CF}')
        a(f'buffer_store_dwordx4 v[{64 + 4 * i}:{67 + 4 * i}], v5, s[20:23], s30 offen {STF}')
        a.label(lab)
    for j in range(5):
        a(f'v_lshlrev_b32 v{100 + 2 * j}, 16, v{10 + j}')
        a(f'v_and_b32 v{101 + 2 * j}, 0xffff0000, v{10 + j}')
    a(f's_mov_b32 s60, {f2h(-1.4426950408889634)}')
    for i in range(4):
        lab = a.newlabel('K1_G')
        a(f's_add_u32 s25, s24, {640 * i}')
        if i == 3:
            a('s_cmp_ge_u32 s25, 2048')
            a(f's_cbranch_scc1 {lab}')
        a('v_mov_b32 v120, 0')
        for j in range(5):
            a(f'v_lshlrev_b32 v110, 16, v{16 + 5 * i + j}')
            a(f'v_and_b32 v111, 0xffff0000, v{16 + 5 * i + j}')
            a(f'v_mul_f32 v110, v110, v{100 + 2 * j}')
            a(f'v_mul_f32 v111, v111, v{101 + 2 * j}')
            round_bf16_pair(a, 110, 111, 112)
            a('v_add_f32 v120, v120, v110')
            a('v_add_f32 v120, v120, v111')
        for sh in (1, 2, 4, 8):
            a('s_nop 1')
            a(f'v_add_f32_dpp v120, v120, v120 row_shr:{sh} row_mask:0xf bank_mask:0xf')
        a('s_nop 1')
        a('v_readlane_b32 s40, v120, 15')
        a('v_readlane_b32 s41, v120, 31')
        a('v_readlane_b32 s42, v120, 47')
        a('v_readlane_b32 s43, v120, 63')
        a('s_nop 1')
        a('v_mov_b32 v121, s40')
        a('v_add_f32 v121, s41, v121')
        a('v_add_f32 v121, s42, v121')
        a('v_add_f32 v121, s43, v121')
        a('v_cvt_pk_bf16_f32 v121, v121, v121')
        a('v_lshlrev_b32 v121, 16, v121')
        a('v_mul_f32 v122, s60, v121')
        a('v_exp_f32 v122, v122')
        a('s_nop 0')
        a('v_add_f32 v122, 1.0, v122')
        a('v_rcp_f32 v122, v122')
        a('s_nop 0')
        a('v_cvt_pk_bf16_f32 v122, v122, v122')
        a('v_lshlrev_b32 v122, 16, v122')
        a('v_sub_f32 v123, 1.0, v122')
        a('v_cvt_pk_bf16_f32 v123, v123, v123')
        a('v_lshlrev_b32 v123, 16, v123')
        a('s_lshl_b32 s30, s25, 3')
        a(f's_add_u32 s30, s30, {GATE}')
        a('v_mov_b32 v124, 0')
        a('s_mov_b64 s[40:41], exec')
        a('s_mov_b64 exec, 1')
        a(f'buffer_store_dwordx2 v[122:123], v124, s[20:23], s30 offen {STF}')
        a('s_mov_b64 exec, s[40:41]')
        a.label(lab)

def gen_k1(a):
    a.raw('.p2align 8')
    a.label('k1_kernel')
    a('s_cmp_ge_u32 s2, 256')
    a('s_cbranch_scc1 K1_END')
    a('s_load_dwordx16 s[64:79], s[0:1], 0')
    a('s_load_dwordx16 s[80:95], s[0:1], 64')
    a('s_load_dwordx2 s[96:97], s[0:1], 128')
    a('v_lshrrev_b32 v2, 6, v0')
    a('v_and_b32 v1, 63, v0')
    a('v_readfirstlane_b32 s52, v2')
    a('s_and_b32 s3, s52, 3')
    a('s_and_b32 s44, s2, 3')
    a('s_lshl_b32 s44, s44, 2')
    a('s_bfe_u32 s46, s2, 0x10002')
    a('s_lshr_b32 s45, s2, 3')
    a('s_and_b32 s43, s45, 3')
    a('s_add_u32 s24, s44, s43')
    a('s_lshr_b32 s43, s45, 2')
    a('s_lshl_b32 s28, s3, 12')
    a('s_lshl_b32 s29, s3, 13')
    a('v_lshrrev_b32 v72, 5, v1')
    a('s_waitcnt lgkmcnt(0)')
    srd(a, 8, 64, 65, 2621440)
    srd(a, 20, 96, 97, WS_SIZE)
    stamp(a, 0)
    a('s_cmp_ge_u32 s43, 5')
    a('s_cbranch_scc1 K1_ISMLP')
    a('s_mul_i32 s25, s46, 5')
    a('s_add_u32 s25, s25, s43')
    a('s_cmp_lt_u32 s52, 4')
    a('s_cbranch_scc1 K1_U')
    a('v_lshrrev_b32 v2, 3, v1')
    a('v_lshrrev_b32 v3, 4, v1')
    a('v_and_b32 v20, 7, v1')
    a('v_xor_b32 v21, v20, v3')
    a('v_xor_b32 v22, 4, v21')
    a('v_lshlrev_b32 v21, 4, v21')
    a('v_lshlrev_b32 v22, 4, v22')
    a('v_and_b32 v74, 3, v2')
    a('v_lshl_add_u32 v74, v72, 5, v74')
    a('s_movk_i32 s30, 1280')
    a('v_mul_lo_u32 v74, v74, s30')
    a('v_add_u32 v4, v74, v21')
    a('v_add_u32 v5, v74, v22')
    a('v_mul_lo_u32 v74, v2, s30')
    a('v_add_u32 v6, v74, v21')
    a('v_add_u32 v7, v74, v22')
    a('s_lshl_b32 s26, s24, 7')
    a('s_lshr_b32 s30, s3, 1')
    a('s_lshl_b32 s30, s30, 6')
    a('s_add_u32 s26, s26, s30')
    a('s_and_b32 s30, s3, 1')
    a('s_lshl_b32 s31, s30, 4')
    a('s_add_u32 s26, s26, s31')
    a('s_mul_i32 s26, s26, 1280')
    a('s_lshl_b32 s27, s25, 6')
    a('s_lshr_b32 s31, s3, 1')
    a('s_lshl_b32 s31, s31, 5')
    a('s_add_u32 s27, s27, s31')
    a('s_mul_i32 s27, s27, 1280')
    a('s_cmp_eq_u32 s30, 0')
    a('s_cselect_b32 s12, s70, s72')
    a('s_cselect_b32 s13, s71, s73')
    a('s_and_b32 s13, s13, 0xffff')
    a('s_mov_b32 s14, 819200')
    a('s_mov_b32 s15, 0x00020000')
    k1_loader(a, False)
    a('s_mul_i32 s24, s24, 10')
    a('s_add_u32 s24, s24, s25')
    a('s_lshl_b32 s24, s24, 2')
    a('s_add_u32 s24, s24, s3')
    side_jobs(a)
    a('s_endpgm')

    a.label('K1_U')
    a('v_and_b32 v23, 31, v1')
    a('v_lshlrev_b32 v23, 7, v23')
    a('v_bfe_u32 v73, v1, 1, 3')
    a('s_lshr_b32 s47, s3, 1')
    a('s_and_b32 s46, s3, 1')
    a('s_lshl_b32 s30, s47, 13')
    a('s_lshl_b32 s31, s46, 13')
    a(f's_add_u32 s31, s31, {WB[0]}')
    for ks in range(4):
        a(f'v_add_u32 v74, {2 * ks}, v72')
        a('v_xor_b32 v74, v74, v73')
        a(f'v_lshl_add_u32 v74, v74, 4, v23')
        a(f'v_add_u32 v{8 + ks}, s30, v74')
        a(f'v_add_u32 v{12 + ks}, s31, v74')
        a(f'v_add_u32 v{16 + ks}, 0x10000, v{12 + ks}')
    a('s_lshl_b32 s42, s25, 6')
    a('s_lshl_b32 s30, s46, 5')
    a('s_add_u32 s42, s42, s30')
    a('v_and_b32 v75, 31, v1')
    a('v_add_u32 v75, s42, v75')
    a('v_lshlrev_b32 v76, 1, v75')
    a('global_load_ushort v77, v76, s[66:67]')
    a('global_load_ushort v78, v76, s[68:69]')
    a('global_load_ushort v79, v76, s[78:79]')
    a('v_lshlrev_b32 v83, 3, v75')
    a(f'v_add_u32 v83, {EEND}, v83')
    a('s_mul_i32 s31, s24, 5120')
    a('v_mov_b32 v48, -1')
    a('v_mov_b32 v49, -1')
    a('s_cmp_lg_u32 s47, 0')
    a('s_cbranch_scc1 K1_U_NOCLR')
    a('buffer_store_dwordx2 v[48:49], v83, s[20:23], s31 offen sc1')
    a.label('K1_U_NOCLR')
    for i in range(64):
        a(f'v_mov_b32 v{ACC + i}, 0')
    a('s_waitcnt vmcnt(0)')
    lam_compute(a, 77, 78, 79, 80, 81, 82, 83)
    a('v_add_f32 v48, -1.0, v80')
    a('v_mul_f32 v49, v77, v77')
    a('v_fma_f32 v49, v78, v78, v49')
    a('v_rcp_f32 v49, v49')
    a('v_mul_f32 v84, v48, v77')
    a('v_fma_f32 v84, v81, v78, v84')
    a('v_mul_f32 v85, v81, v77')
    a('v_fma_f32 v85, -v48, v78, v85')
    a('v_add_f32 v49, v49, v49')
    a('v_mul_f32 v84, v84, v49')
    a('v_mul_f32 v85, v85, v49')
    def csq(dr, di, sr, si):
        a(f'v_mul_f32 v48, v{si}, v{si}')
        a(f'v_mul_f32 v49, v{sr}, v{si}')
        a(f'v_fma_f32 v{dr}, v{sr}, v{sr}, -v48')
        a(f'v_add_f32 v{di}, v49, v49')
    csq(86, 87, 80, 81)
    for _ in range(4): csq(86, 87, 86, 87)
    csq(88, 89, 86, 87)
    csq(88, 89, 88, 89)
    a('s_lshl_b32 s53, 1, s24')
    a('s_sub_u32 s54, s53, 1')
    a('s_lshl_b32 s30, s25, 2')
    a('v_mov_b32 v82, s30')
    a('v_mov_b32 v83, s53')
    k1_mainloop(a, False)
    stamp(a, 0 if STU else 2)
    a('global_load_dword v83, v82, s[94:95] sc1')
    a('s_nop 15')
    def rr(j): return acc(j >> 4, 0) + (j & 15)
    def ri(j): return acc(j >> 4, 1) + (j & 15)
    for j in range(1, 32):
        a(f'v_fma_f32 v{rr(j)}, -v81, v{ri(j-1)}, v{rr(j)}')
        a(f'v_fma_f32 v{ri(j)}, v81, v{rr(j-1)}, v{ri(j)}')
        a(f'v_fma_f32 v{rr(j)}, v80, v{rr(j-1)}, v{rr(j)}')
        a(f'v_fma_f32 v{ri(j)}, v80, v{ri(j-1)}, v{ri(j)}')
    a('v_and_b32 v56, 31, v1')
    a('s_lshl_b32 s30, s46, 5')
    a('v_add_u32 v56, s30, v56')
    a('v_lshlrev_b32 v56, 3, v56')
    a('v_lshl_add_u32 v57, v72, 9, v56')
    a('s_lshl_b32 s30, s47, 10')
    a('v_add_u32 v57, s30, v57')
    a(f'v_mov_b32 v48, v{rr(31)}')
    a(f'v_mov_b32 v49, v{ri(31)}')
    a('ds_write_b64 v57, v[48:49]')
    a('s_waitcnt lgkmcnt(0)')
    a('s_barrier')
    for c in range(4):
        a(f'ds_read_b64 v[{40 + 2 * c}:{41 + 2 * c}], v56 offset:{c * 512}')
    a('v_lshlrev_b32 v56, 3, v75')
    a(f'v_add_u32 v56, {EEND}, v56')
    a('s_mul_i32 s31, s24, 5120')
    a('s_waitcnt lgkmcnt(0)')
    def cstep(dr, di, sr, si, er_, ei_, Lr, Li):
        a(f'v_fma_f32 v52, -v{Li}, v{si}, v{er_}')
        a(f'v_fma_f32 v53, v{Li}, v{sr}, v{ei_}')
        a(f'v_fma_f32 v{dr}, v{Lr}, v{sr}, v52')
        a(f'v_fma_f32 v{di}, v{Lr}, v{si}, v53')
    cstep(48, 49, 40, 41, 42, 43, 86, 87)
    cstep(48, 49, 48, 49, 44, 45, 86, 87)
    cstep(48, 49, 48, 49, 46, 47, 86, 87)
    a('s_cmp_lg_u32 s47, 0')
    a('s_cbranch_scc1 K1_U_NOPUB')
    a('buffer_store_dwordx2 v[48:49], v56, s[20:23], s31 offen sc1')
    a.label('K1_U_NOPUB')
    if STU: stamp(a, 1)
    for j in range(32):
        a(f'v_mul_f32 v58, v85, v{ri(j)}')
        a(f'v_mul_f32 v59, v85, v{rr(j)}')
        a(f'v_fma_f32 v{rr(j)}, v84, v{rr(j)}, -v58')
        a(f'v_fma_f32 v{ri(j)}, -v84, v{ri(j)}, -v59')
    a('v_mov_b32 v50, 0')
    a('v_mov_b32 v51, 0')
    a('s_cmp_eq_u32 s24, 0')
    a('s_cbranch_scc1 K1_U_CARRY')
    a('s_mov_b32 s55, 0')
    a.label('K1_U_FPOLL')
    a('s_waitcnt vmcnt(0)')
    a('v_readfirstlane_b32 s30, v83')
    a('s_and_b32 s30, s30, s54')
    a('s_cmp_eq_u32 s30, s54')
    a('s_cbranch_scc1 K1_U_POLL')
    a('s_add_u32 s55, s55, 1')
    a('s_cmp_gt_u32 s55, 0x40000')
    a('s_cbranch_scc1 K1_U_POLL')
    a('s_sleep 1')
    a('global_load_dword v83, v82, s[94:95] sc1')
    a('s_branch K1_U_FPOLL')
    def er(c): return 192 + 2 * c
    a.label('K1_U_POLL')
    for c in range(15):
        if c:
            a(f's_cmp_le_u32 s24, {c}')
            a('s_cbranch_scc1 K1_U_ELD')
        a(f's_mov_b32 s30, {c * 5120}')
        a(f'buffer_load_dwordx2 v[{er(c)}:{er(c)+1}], v56, s[20:23], s30 offen sc1')
    a.label('K1_U_ELD')
    a('s_mov_b64 s[56:57], 0')
    a('s_waitcnt vmcnt(0)')
    for c in range(15):
        if c:
            a(f's_cmp_le_u32 s24, {c}')
            a('s_cbranch_scc1 K1_U_CHK')
        a(f'v_cmp_eq_u32 vcc, -1, v{er(c)}')
        a('s_or_b64 s[56:57], s[56:57], vcc')
    a.label('K1_U_CHK')
    a('s_cmp_eq_u64 s[56:57], 0')
    a('s_cbranch_scc1 K1_U_GOT')
    a('s_add_u32 s55, s55, 1')
    a('s_cmp_gt_u32 s55, 0x40000')
    a('s_cbranch_scc1 K1_U_GOT')
    a('s_sleep 1')
    a('s_branch K1_U_POLL')
    a.label('K1_U_GOT')
    if STU == 1: stamp(a, 2)
    for c in range(15):
        cstep(50, 51, 50, 51, er(c), er(c) + 1, 88, 89)
        a(f's_cmp_eq_u32 s24, {c + 1}')
        a('s_cbranch_scc1 K1_U_CARRY')
    a.label('K1_U_CARRY')
    if STU == 2: stamp(a, 2)
    a('s_cmp_eq_u32 s47, 0')
    a('s_cbranch_scc1 K1_U_RH0')
    cstep(50, 51, 50, 51, 40, 41, 86, 87)
    cstep(50, 51, 50, 51, 42, 43, 86, 87)
    a('v_mov_b32 v40, v44')
    a('v_mov_b32 v41, v45')
    a.label('K1_U_RH0')
    cstep(54, 55, 50, 51, 40, 41, 86, 87)
    a('v_cmp_eq_u32 vcc, 1, v72')
    a('s_nop 1')
    a('v_cndmask_b32 v50, v50, v54, vcc')
    a('v_cndmask_b32 v51, v51, v55, vcc')
    a('v_mul_f32 v52, v81, v51')
    a('v_mul_f32 v53, v81, v50')
    a('v_fma_f32 v54, v80, v50, -v52')
    a('v_fma_f32 v55, v80, v51, v53')
    TB = 16384
    PS = 64 * 272
    a('v_and_b32 v56, 31, v1')
    a('s_lshl_b32 s30, s46, 5')
    a('v_add_u32 v56, s30, v56')
    a('v_mul_u32_u24 v56, 272, v56')
    a('v_lshl_add_u32 v56, v72, 6, v56')
    a('s_lshl_b32 s31, s47, 7')
    a('v_add_u32 v56, s31, v56')
    a('v_mul_f32 v52, v85, v55')
    a('v_mul_f32 v53, v85, v54')
    a('v_fma_f32 v57, v84, v54, -v52')
    a('v_fma_f32 v55, -v84, v55, -v53')
    a('v_mov_b32 v54, v57')
    for j in range(32):
        a(f'v_add_f32 v{rr(j)}, v{rr(j)}, v54')
        a(f'v_add_f32 v{ri(j)}, v{ri(j)}, v55')
        if j < 31:
            a('v_mul_f32 v52, v81, v55')
            a('v_mul_f32 v53, v81, v54')
            a('v_fma_f32 v54, v80, v54, v52')
            a('v_fma_f32 v55, v80, v55, -v53')
        if (j & 7) == 7:
            q = j >> 3
            for part, rf in ((0, rr), (1, ri)):
                o = 60 + part * 4
                for i in range(4):
                    a(f'v_cvt_pk_bf16_f32 v{o + i}, v{rf(8 * q + 2 * i)}, v{rf(8 * q + 2 * i + 1)}')
                a(f'ds_write_b128 v56, v[{o}:{o+3}] offset:{TB + part * PS + q * 16}')
    a('v_lshrrev_b32 v57, 4, v1')
    a('v_bfe_u32 v58, v1, 2, 2')
    a('v_lshl_add_u32 v57, v57, 3, v58')
    a('v_add_u32 v57, s30, v57')
    a('v_mul_u32_u24 v57, 272, v57')
    a('v_and_b32 v58, 3, v1')
    a('v_lshl_add_u32 v57, v58, 3, v57')
    a('v_add_u32 v57, s31, v57')
    a('v_lshlrev_b32 v58, 4, v1')
    a('s_lshl_b32 s31, s24, 1')
    a('s_add_u32 s31, s31, s47')
    a('s_mul_i32 s31, s31, 40')
    a('s_lshl_b32 s30, s25, 1')
    a('s_add_u32 s31, s31, s30')
    a('s_add_u32 s31, s31, s46')
    a('s_lshl_b32 s31, s31, 12')
    a(f's_add_u32 s31, s31, {HF}')
    a('s_waitcnt lgkmcnt(0)')
    for part in range(2):
        for tb in range(4):
            r = 192 + (part * 4 + tb) * 4
            a(f'ds_read_b64_tr_b16 v[{r}:{r+1}], v57 offset:{TB + part * PS + tb * 32}')
            a(f'ds_read_b64_tr_b16 v[{r+2}:{r+3}], v57 offset:{TB + part * PS + 1088 + tb * 32}')
    for part in range(2):
        for tb in range(4):
            k = part * 4 + tb
            r = 192 + k * 4
            a(f's_waitcnt lgkmcnt({2 * (7 - k)})')
            off = part * 20 * 4096 + tb * 1024
            a(f's_add_u32 s30, s31, {off}')
            a(f'buffer_store_dwordx4 v[{r}:{r+3}], v58, s[20:23], s30 offen {STF}')
    stamp_flush(a, 0, 3)
    a('s_branch K1_END')

    a.label('K1_ISMLP')
    a('s_mul_i32 s25, s46, 3')
    a('s_add_u32 s25, s25, s43')
    a('s_sub_u32 s25, s25, 5')
    a('s_cmp_lt_u32 s52, 4')
    a('s_cbranch_scc1 K1_MLP')
    a('v_lshrrev_b32 v2, 3, v1')
    a('v_lshrrev_b32 v3, 4, v1')
    a('v_and_b32 v20, 7, v1')
    a('v_xor_b32 v21, v20, v3')
    a('v_xor_b32 v22, 4, v21')
    a('v_lshlrev_b32 v21, 4, v21')
    a('v_lshlrev_b32 v22, 4, v22')
    a('s_movk_i32 s30, 1280')
    a('v_mul_lo_u32 v74, v2, s30')
    a('v_add_u32 v4, v74, v21')
    a('v_add_u32 v5, v74, v22')
    a('v_and_b32 v74, 31, v1')
    a('v_lshlrev_b32 v75, 2, v72')
    a('v_xor_b32 v74, v74, v75')
    a('v_xor_b32 v75, 8, v74')
    a('s_movk_i32 s30, 3072')
    a('v_mul_lo_u32 v76, v72, s30')
    a('v_lshl_add_u32 v6, v74, 4, v76')
    a('v_lshl_add_u32 v7, v75, 4, v76')
    a('s_lshl_b32 s26, s24, 7')
    a('s_lshl_b32 s30, s3, 5')
    a('s_add_u32 s26, s26, s30')
    a('s_mul_i32 s26, s26, 1280')
    a('s_mul_i32 s27, s3, 49152')
    a('s_lshl_b32 s30, s25, 9')
    a('s_add_u32 s27, s27, s30')
    srd(a, 12, 84, 85, 1966080)
    k1_loader(a, True)
    mlp_bias_loads(a)
    mish_consts(a)
    a('v_lshlrev_b32 v2, 4, v1')
    a('s_lshl_b32 s30, s3, 14')
    a(f's_add_u32 s30, s30, {WB[1]}')
    a('v_add_u32 v2, s30, v2')
    a('s_barrier')
    for q in range(16):
        r = acc(2, 0) + q * 4
        a(f'ds_read_b128 v[{r}:{r+3}], v2 offset:{q * 1024}')
    a('s_waitcnt vmcnt(0) lgkmcnt(0)')
    mlp_epilogue(a, (2, 3), 'L')
    a('s_endpgm')

    a.label('K1_MLP')
    a('v_lshrrev_b32 v3, 4, v1')
    a('v_and_b32 v23, 31, v1')
    a('v_lshlrev_b32 v23, 7, v23')
    a('v_bfe_u32 v73, v1, 1, 3')
    for ks in range(4):
        a(f'v_add_u32 v74, {2 * ks}, v72')
        a('v_xor_b32 v74, v74, v73')
        a(f'v_lshl_add_u32 v{8 + ks}, v74, 4, v23')
    a('v_bfe_u32 v74, v1, 2, 2')
    a('v_lshl_add_u32 v75, v72, 3, v74')
    a('v_lshlrev_b32 v75, 9, v75')
    a('v_bfe_u32 v76, v1, 1, 1')
    a('v_lshl_add_u32 v75, v76, 3, v75')
    a('v_and_b32 v76, 1, v3')
    a('v_and_b32 v77, 1, v1')
    a('v_lshl_add_u32 v76, v76, 1, v77')
    a('s_lshl_b32 s30, s3, 3')
    a('v_add_u32 v76, s30, v76')
    a('v_lshlrev_b32 v74, 2, v74')
    for jt in range(2):
        a(f'v_add_u32 v77, {4 * jt}, v76')
        a('v_xor_b32 v77, v77, v74')
        a(f'v_lshl_add_u32 v{12 + jt}, v77, 4, v75')
        a(f'v_add_u32 v{12 + jt}, {WB[0]}, v{12 + jt}')
        a(f'v_add_u32 v{16 + jt}, 0x10000, v{12 + jt}')
    mlp_bias_loads(a)
    mish_consts(a)
    T = list(range(56, 64))
    a('v_and_b32 v24, 1, v0')
    a('v_lshlrev_b32 v24, 31, v24')
    a(f'v_add_u32 v25, {LUT_LO2}, v0')
    a('v_lshrrev_b32 v25, 1, v25')
    a('v_lshl_or_b32 v25, v25, 16, v24')
    a('v_lshlrev_b32 v26, 2, v0')
    for i in range(0, 14, 2):
        a(f'v_add_u32 v27, {(128 * i) << 16}, v25')
        a(f'v_add_u32 v28, {(128 * (i + 1)) << 16}, v25')
        mish_pair(a, 27, 28, None, T, want_th=True)
        a(f'ds_write_b32 v26, v{T[0]} offset:{LUTB + 1024 * i}')
        a(f'ds_write_b32 v26, v{T[1]} offset:{LUTB + 1024 * (i + 1)}')
    for i in range(128):
        a(f'v_mov_b32 v{ACC + i}, 0')
    a('s_waitcnt lgkmcnt(0)')
    k1_mainloop(a, True)
    stamp(a, 2)
    a('v_lshlrev_b32 v2, 4, v1')
    a('s_lshl_b32 s30, s3, 14')
    a(f's_add_u32 s30, s30, {WB[1]}')
    a('v_add_u32 v2, s30, v2')
    a('s_nop 7')
    for q in range(16):
        r = acc(2, 0) + q * 4
        a(f'ds_write_b128 v2, v[{r}:{r+3}] offset:{q * 1024}')
    a('s_waitcnt vmcnt(0) lgkmcnt(0)')
    a('s_barrier')
    mlp_epilogue(a, (0, 1), 'C')
    stamp_flush(a, 0, 3, 1)
    a.label('K1_END')
    a('s_endpgm')

def qacc(fa, fb): return (fa * 5 + fb) * 4
QD = 5
def qfr(st, i): return 16 + st * 36 + i * 4

def q_loads(a, st):
    for fa in range(4):
        r = qfr(st, fa)
        a(f'buffer_load_dwordx4 v[{r}:{r+3}], v2, s[20:23], s26 offen offset:{fa * 1024}')
    for fb in range(5):
        r = qfr(st, 4 + fb)
        if fb < 4:
            a(f'buffer_load_dwordx4 v[{r}:{r+3}], v2, s[20:23], s27 offen offset:{fb * 1024}')
        else:
            a(f'buffer_load_dwordx4 v[{r}:{r+3}], v3, s[20:23], s27 offen')
    a('s_add_u32 s26, s26, 4096')
    a('s_add_u32 s27, s27, 5120')

def q_loop(a, KS, nKS, abase, bbase):
    a(f's_mul_i32 s26, s24, {nKS}')
    a(f's_mul_i32 s30, s31, {KS}')
    a('s_add_u32 s26, s26, s30')
    a('s_lshl_b32 s26, s26, 12')
    a(f's_add_u32 s26, s26, {abase}')
    a(f's_mul_i32 s27, s25, {nKS}')
    a('s_add_u32 s27, s27, s30')
    a('s_mul_i32 s27, s27, 5120')
    a(f's_add_u32 s27, s27, {bbase}')
    for s in range(min(QD, KS)):
        q_loads(a, s)
    for i in range(80):
        a(f'v_accvgpr_write_b32 a{i}, 0')
    for s in range(KS):
        st = s % QD
        inflight = min(QD, KS - s)
        a(f's_waitcnt vmcnt({9 * (inflight - 1)})')
        if s == 0: stamp(a, 1)
        for fa in range(4):
            for fb in range(5):
                c = qacc(fa, fb); A = qfr(st, fa); B = qfr(st, 4 + fb)
                a(f'v_mfma_f32_16x16x32_bf16 a[{c}:{c+3}], v[{A}:{A+3}], v[{B}:{B+3}], a[{c}:{c+3}]')
        if s + QD < KS:
            q_loads(a, st)

def common_prologue(a, endlabel, nwg):
    a(f's_cmp_ge_u32 s2, {nwg}')
    a(f's_cbranch_scc1 {endlabel}')
    a(f's_load_dwordx2 s[6:7], s[0:1], {KA["ws"]}')
    a('v_lshrrev_b32 v2, 6, v0')
    a('v_and_b32 v1, 63, v0')
    a('v_readfirstlane_b32 s3, v2')
    a('s_waitcnt lgkmcnt(0)')
    srd(a, 20, 6, 7, WS_SIZE)
    stamp(a, 0)

def gen_k2(a):
    a.raw('.p2align 8')
    a.label('k2_kernel')
    common_prologue(a, 'K2_END', 160)
    a.label('K2_FIX')
    a('s_mov_b32 s24, s2')
    a('s_mov_b32 s30, 0x33333334')
    a('s_mul_hi_u32 s25, s24, s30')
    a('s_mul_i32 s30, s25, 5')
    a('s_sub_u32 s24, s24, s30')
    a(f's_load_dwordx4 s[36:39], s[0:1], {KA["lre"]}')
    a(f's_load_dwordx2 s[40:41], s[0:1], {KA["logdt"]}')
    a('v_lshrrev_b32 v2, 4, v0')
    a('v_and_b32 v3, 15, v0')
    a('s_lshl_b32 s30, s25, 4')
    a('v_add_u32 v4, s30, v2')
    a('s_movk_i32 s30, 1280')
    a('v_mul_lo_u32 v4, v4, s30')
    a('s_lshl_b32 s31, s24, 4')
    a('v_add_u32 v4, v3, v4')
    a('v_add_u32 v4, s31, v4')
    a('v_lshlrev_b32 v4, 4, v4')
    a(f'v_add_u32 v4, {SLOC}, v4')
    a('s_lshl_b32 s31, s24, 7')
    def sloc_loads():
        for part in range(2):
            for ch in range(8):
                off = part * 10240 + ch * 1280
                a(f's_movk_i32 s30, {off}')
                a(f'buffer_load_dwordx4 v[{128 + part * 32 + ch * 4}:{131 + part * 32 + ch * 4}], v4, s[20:23], s30 offen')
    a('s_cmp_lt_u32 s3, 2')
    a('s_cbranch_scc1 K2_FIX_P1')
    sloc_loads()
    a('s_branch K2_FIX_P2')
    a.label('K2_FIX_P1')
    a('v_add_u32 v5, s31, v0')
    a('v_lshlrev_b32 v6, 2, v5')
    a(f'v_add_u32 v6, {EEND}, v6')
    for c in range(31):
        a(f's_mov_b32 s30, {c * 5120}')
        a(f'buffer_load_dword v{64 + 2 * c}, v6, s[20:23], s30 offen')
        a(f'buffer_load_dword v{65 + 2 * c}, v6, s[20:23], s30 offen offset:2560')
    a('v_lshlrev_b32 v6, 1, v5')
    a('s_waitcnt lgkmcnt(0)')
    a('global_load_ushort v10, v6, s[36:37]')
    a('global_load_ushort v11, v6, s[38:39]')
    a('global_load_ushort v12, v6, s[40:41]')
    sloc_loads()
    a('s_waitcnt vmcnt(16)')
    lam_compute(a, 10, 11, 12, 13, 14, 15, 16)
    a('v_add_f32 v15, -1.0, v13')
    a('v_mul_f32 v16, v10, v10')
    a('v_fma_f32 v16, v11, v11, v16')
    a('v_rcp_f32 v16, v16')
    a('v_mul_f32 v17, v15, v10')
    a('v_fma_f32 v17, v14, v11, v17')
    a('v_mul_f32 v18, v14, v10')
    a('v_fma_f32 v18, -v15, v11, v18')
    a('v_add_f32 v16, v16, v16')
    a('v_mul_f32 v17, v17, v16')
    a('v_mul_f32 v18, v18, v16')
    def csq(dr, di, sr, si):
        a(f'v_mul_f32 v24, v{si}, v{si}')
        a(f'v_mul_f32 v25, v{sr}, v{si}')
        a(f'v_fma_f32 v{dr}, v{sr}, v{sr}, -v24')
        a(f'v_add_f32 v{di}, v25, v25')
    csq(19, 20, 13, 14)
    csq(21, 22, 19, 20)
    csq(19, 20, 21, 22)
    csq(19, 20, 19, 20)
    csq(19, 20, 19, 20)
    csq(19, 20, 19, 20)
    a('v_mov_b32 v26, 0')
    a('v_mov_b32 v27, 0')
    for c in range(31):
        a(f's_cmp_le_u32 s25, {c}')
        a('s_cbranch_scc1 K2_FIX_CARRY_DONE')
        a(f'v_fma_f32 v{64 + 2 * c}, -v20, v27, v{64 + 2 * c}')
        a(f'v_fma_f32 v{65 + 2 * c}, v20, v26, v{65 + 2 * c}')
        a(f'v_fma_f32 v28, v19, v26, v{64 + 2 * c}')
        a(f'v_fma_f32 v27, v19, v27, v{65 + 2 * c}')
        a('v_mov_b32 v26, v28')
    a.label('K2_FIX_CARRY_DONE')
    a('v_mul_f32 v28, v14, v27')
    a('v_mul_f32 v29, v14, v26')
    a('v_fma_f32 v30, v13, v26, -v28')
    a('v_fma_f32 v31, v13, v27, v29')
    a('v_lshlrev_b32 v6, 3, v0')
    for q in range(16):
        a(f'ds_write_b64 v6, v[30:31] offset:{q * 1024}')
        if q < 15:
            a('v_mul_f32 v28, v22, v31')
            a('v_mul_f32 v29, v22, v30')
            a('v_fma_f32 v32, v21, v30, -v28')
            a('v_fma_f32 v31, v21, v31, v29')
            a('v_mov_b32 v30, v32')
    a('v_mov_b32 v32, v13')
    a('v_mov_b32 v33, v14')
    a('v_mov_b32 v34, v17')
    a('v_mov_b32 v35, v18')
    a('v_lshlrev_b32 v6, 4, v0')
    a('ds_write_b128 v6, v[32:35] offset:16384')
    a.label('K2_FIX_P2')
    a('s_waitcnt lgkmcnt(0)')
    stamp(a, 1)
    a('s_barrier')
    a('v_lshlrev_b32 v5, 10, v2')
    a('v_lshl_add_u32 v5, v3, 6, v5')
    a('v_lshlrev_b32 v6, 7, v3')
    for i in range(4):
        a(f'ds_read_b128 v[{16 + 4 * i}:{19 + 4 * i}], v5 offset:{16 * i}')
    for ch in range(8):
        a(f'ds_read_b128 v[{32 + 4 * ch}:{35 + 4 * ch}], v6 offset:{16384 + 16 * ch}')
    a('s_mul_i32 s30, s25, 40')
    a('s_lshl_b32 s31, s24, 2')
    a('s_add_u32 s30, s30, s31')
    a('v_lshrrev_b32 v7, 2, v3')
    a('v_add_u32 v7, s30, v7')
    a('v_lshrrev_b32 v8, 2, v2')
    a('v_lshl_add_u32 v7, v7, 2, v8')
    a('v_lshlrev_b32 v7, 10, v7')
    a('v_and_b32 v8, 3, v2')
    a('v_lshl_add_u32 v7, v8, 6, v7')
    a('v_and_b32 v8, 3, v3')
    a('v_lshl_add_u32 v7, v8, 8, v7')
    a(f'v_add_u32 v7, {HF}, v7')
    a('s_mov_b32 s30, 81920')
    a('s_waitcnt vmcnt(0) lgkmcnt(0)')
    stamp(a, 2)
    for ch in range(8):
        gr = 16 + 2 * ch; gi = gr + 1
        lr = 32 + 4 * ch; li = lr + 1; cr = lr + 2; ci = lr + 3
        for j in range(4):
            sr = 128 + ch * 4 + j; si = 160 + ch * 4 + j
            a(f'v_add_f32 v{sr}, v{sr}, v{gr}')
            a(f'v_add_f32 v{si}, v{si}, v{gi}')
            a(f'v_mul_f32 v8, v{ci}, v{si}')
            a(f'v_mul_f32 v9, v{ci}, v{sr}')
            a(f'v_fma_f32 v{64 + j * 8 + ch}, v{cr}, v{sr}, -v8')
            a(f'v_fma_f32 v{96 + j * 8 + ch}, -v{cr}, v{si}, -v9')
            if j < 3:
                a(f'v_mul_f32 v8, v{li}, v{gi}')
                a(f'v_mul_f32 v9, v{li}, v{gr}')
                a(f'v_fma_f32 v10, v{lr}, v{gr}, -v8')
                a(f'v_fma_f32 v{gi}, v{lr}, v{gi}, v9')
                a(f'v_mov_b32 v{gr}, v10')
    for j in range(4):
        for part in range(2):
            b0 = (64 if part == 0 else 96) + j * 8
            o = 128 + (j * 2 + part) * 4
            for i in range(4):
                a(f'v_cvt_pk_bf16_f32 v{o + i}, v{b0 + 2 * i}, v{b0 + 2 * i + 1}')
            so = '0' if part == 0 else 's30'
            a(f'buffer_store_dwordx4 v[{o}:{o+3}], v7, s[20:23], {so} offen offset:{j * 16}')
    stamp_flush(a, 1, 3)
    a.label('K2_END')
    a('s_endpgm')

def gen_k3(a):
    a.raw('.p2align 8')
    a.label('k3_kernel')
    a('s_cmp_ge_u32 s2, 256')
    a('s_cbranch_scc1 K3_END')
    a(f's_load_dwordx2 s[6:7], s[0:1], {KA["ws"]}')
    a(f's_load_dwordx2 s[4:5], s[0:1], {KA["x"]}')
    a(f's_load_dwordx2 s[32:33], s[0:1], {KA["dskip"]}')
    a(f's_load_dwordx2 s[34:35], s[0:1], {KA["out"]}')
    a('v_lshrrev_b32 v2, 6, v0')
    a('v_and_b32 v1, 63, v0')
    a('v_readfirstlane_b32 s3, v2')
    if K3MAP == 0:
        a('s_and_b32 s24, s2, 31')
        a('s_lshr_b32 s25, s2, 5')
    else:
        a('s_bfe_u32 s24, s2, 0x20001')
        a('s_lshl_b32 s24, s24, 3')
        a('s_bfe_u32 s30, s2, 0x30003')
        a('s_add_u32 s24, s24, s30')
        a('s_and_b32 s25, s2, 1')
        a('s_lshl_b32 s25, s25, 2')
        a('s_lshr_b32 s30, s2, 6')
        a('s_add_u32 s25, s25, s30')
    a('v_lshlrev_b32 v2, 4, v1')
    a('v_add_u32 v3, 4096, v2')
    a('s_lshl_b32 s30, s24, 6')
    a('s_lshl_b32 s31, s3, 4')
    a('s_add_u32 s30, s30, s31')
    a('v_lshrrev_b32 v5, 4, v1')
    a('v_lshlrev_b32 v5, 2, v5')
    a('v_add_u32 v5, s30, v5')
    a('v_lshlrev_b32 v6, 3, v5')
    a(f'v_add_u32 v6, {GATE}, v6')
    a('s_mul_i32 s30, s25, 80')
    a('v_and_b32 v8, 15, v1')
    a('v_add_u32 v8, s30, v8')
    a('v_lshlrev_b32 v9, 1, v8')
    a('s_movk_i32 s30, 1280')
    a('v_mul_lo_u32 v10, v5, s30')
    a('v_add_u32 v10, v10, v9')
    a('v_lshlrev_b32 v11, 1, v10')
    a('s_waitcnt lgkmcnt(0)')
    srd(a, 20, 6, 7, WS_SIZE)
    srd(a, 8, 4, 5, 2621440)
    srd(a, 12, 34, 35, 5242880)
    stamp(a, 0)
    G0 = 196
    a(f'buffer_load_dwordx4 v[{G0}:{G0+3}], v6, s[20:23], 0 offen')
    a(f'buffer_load_dwordx4 v[{G0+4}:{G0+7}], v6, s[20:23], 0 offen offset:16')
    for fb in range(5):
        a(f'global_load_ushort v{204 + fb}, v9, s[32:33] offset:{32 * fb}')
    for r in range(4):
        a(f's_mov_b32 s30, {r * 1280}')
        for fb in range(5):
            a(f'buffer_load_ushort v{210 + fb * 4 + r}, v10, s[8:11], s30 offen offset:{32 * fb}')
    a('s_and_b32 s31, s3, 1')
    a('s_cmp_ge_u32 s3, 2')
    a('s_cbranch_scc1 K3_H')
    q_loop(a, 24, 48, ACTF, W2F)
    a('s_branch K3_RED')
    a.label('K3_H')
    q_loop(a, 20, 40, HF, CF)
    a.label('K3_RED')
    stamp(a, 2)
    a('s_nop 7')
    a('s_mul_i32 s30, s3, 20480')
    a('v_add_u32 v4, s30, v2')
    for t in range(20):
        a(f'ds_write_b128 v4, a[{t * 4}:{t * 4 + 3}] offset:{t * 1024}')
    for fb in range(5):
        a(f'v_lshlrev_b32 v{204 + fb}, 16, v{204 + fb}')
        for r in range(4):
            x = 210 + fb * 4 + r
            a(f'v_lshlrev_b32 v{x}, 16, v{x}')
            a(f'v_mul_f32 v{x}, v{x}, v{204 + fb}')
        round_bf16_pair(a, 210 + fb * 4, 211 + fb * 4, 12)
        round_bf16_pair(a, 212 + fb * 4, 213 + fb * 4, 12)
    a('s_waitcnt lgkmcnt(0)')
    a('s_barrier')
    a('s_mul_i32 s30, s3, 5120')
    a('v_add_u32 v4, s30, v2')
    a('v_add_u32 v7, 40960, v4')
    for u in range(4):
        for fb in range(5):
            r = 16 + (u * 5 + fb) * 4
            a(f'ds_read_b128 v[{r}:{r+3}], v{4 if u < 2 else 7} offset:{(u & 1) * 20480 + fb * 1024}')
    a('s_waitcnt lgkmcnt(0)')
    for fb in range(5):
        for r in range(4):
            d = 16 + fb * 4 + r
            a(f'v_add_f32 v{d}, v{d}, v{d + 20}')
            a(f'v_add_f32 v{d + 40}, v{d + 40}, v{d + 60}')
        d = 16 + fb * 4
        round_bf16_pair(a, d, d + 1, 12)
        round_bf16_pair(a, d + 2, d + 3, 12)
        for r in range(4):
            a(f'v_mul_f32 v{d + r}, v{d + r}, v{G0 + 1 + 2 * r}')
        round_bf16_pair(a, d, d + 1, 12)
        round_bf16_pair(a, d + 2, d + 3, 12)
        for r in range(4):
            y = d + 40 + r; x = 210 + fb * 4 + r
            a(f'v_add_f32 v{y}, v{y}, v{x}')
            a(f'v_mul_f32 v{y}, v{G0 + 2 * r}, v{y}')
            a(f'v_add_f32 v{y}, v{y}, v{d + r}')
    for r in range(4):
        a(f's_mov_b32 s30, {r * 2560}')
        for fb in range(5):
            a(f'buffer_store_dword v{56 + fb * 4 + r}, v11, s[12:15], s30 offen offset:{64 * fb}')
    stamp_flush(a, 2, 3)
    a.label('K3_END')
    a('s_endpgm')

def desc(name, vgpr=256):
    return f'''.p2align 6
.amdhsa_kernel {name}
  .amdhsa_next_free_vgpr {vgpr}
  .amdhsa_next_free_sgpr 102
  .amdhsa_accum_offset 256
  .amdhsa_group_segment_fixed_size 0
  .amdhsa_kernarg_size 136
  .amdhsa_user_sgpr_count 2
  .amdhsa_user_sgpr_kernarg_segment_ptr 1
  .amdhsa_system_sgpr_workgroup_id_x 1
  .amdhsa_float_denorm_mode_32 3
.end_amdhsa_kernel
'''

def main(out):
    hdr = open(f'cdna_kernels/{NAME}.s.ref').read().split('; Override launch')[0]
    a.raw(hdr.rstrip('\n'))
    a.raw(f'; @launch kernel=k1_kernel grid=(256,1,1) block=(512,1,1) lds={K1_LDS}')
    a.raw('; @launch kernel=k3_kernel grid=(256,1,1) block=(256,1,1) lds=81920')
    a.raw('.amdgcn_target "amdgcn-amd-amdhsa--gfx950"')
    a.raw('.text')
    for k in ('k1_kernel', 'k3_kernel'):
        a.raw(f'.globl {k}')
        a.raw(f'.type {k},@function')
    gen_k1(a); gen_k3(a)
    a.raw('.section .rodata,"a"')
    a.raw(desc('k1_kernel')); a.raw(desc('k3_kernel', 336))
    t = a.text()
    open(out, 'w').write(t)
    w = lint(t)
    for x in w[:40]: print('HAZARD', x)
    print('lines', len(t.split('\n')), 'bytes', len(t), 'hazards', len(w))

if __name__ == '__main__':
    main(sys.argv[1] if len(sys.argv) > 1 else f'cdna_kernels/{NAME}.s')
```
